```python
import torch

def _softmax(x, axis=-1):
    return torch.softmax(x, dim=axis)
def _gelu(x):
    return torch.nn.functional.gelu(x, approximate="tanh")
def _silu(x):
    return torch.nn.functional.silu(x)
def _sigmoid(x):
    return torch.sigmoid(x)
def _layernorm(x, axis=-1, eps=1e-5):
    m = x.mean(dim=axis, keepdim=True)
    v = x.var(dim=axis, keepdim=True, unbiased=False)
    return (x - m) / torch.sqrt(v + eps)
def _scatter_add(tgt, idx, src, axis=0):
    return tgt.clone().index_add_(axis, idx, src)
def _segment_sum(src, seg, n):
    out = torch.zeros((n,) + src.shape[1:], dtype=src.dtype)
    return out.index_add_(0, seg, src)
def _pad(x, pw):
    flat = tuple(v for pair in reversed(pw) for v in pair)
    return torch.nn.functional.pad(x, flat)

kernel_name = 'standalone__ssm_conv_s4__prompt'

def setup_inputs():

    _w = (lambda a: (lambda t: t.to(torch.bfloat16) if t.is_floating_point() else t)(torch.as_tensor(a)))
    B, L, D, N = 1, 2048, 512, 128
    A_re = -(lambda _x: torch.exp(torch.as_tensor(_x)))((lambda *s: torch.randn(*s, dtype=torch.bfloat16) * 6.4)(D, N))
    A_im = torch.pi * (lambda *s: torch.randn(*s, dtype=torch.bfloat16) * 0.05)(D, N)
    B_re = (lambda *s: torch.randn(*s, dtype=torch.bfloat16) * 0.1)(D, N)
    B_im = (lambda *s: torch.randn(*s, dtype=torch.bfloat16) * 0.1)(D, N)
    C_re = (lambda *s: torch.randn(*s, dtype=torch.bfloat16) * 0.1)(D, N)
    C_im = (lambda *s: torch.randn(*s, dtype=torch.bfloat16) * 0.1)(D, N)
    log_dt = (lambda *s: torch.randn(*s, dtype=torch.bfloat16) * 0.05)(D) * 0.5 - 4.0
    Dskip = (lambda *s: torch.randn(*s, dtype=torch.bfloat16) * 0.05)(D)
    return {
        "u": _w((lambda *s: torch.randn(*s, dtype=torch.bfloat16) * 0.05)(B, L, D)),
        "A_re": _w(A_re),
        "A_im": _w(A_im),
        "B_re": _w(B_re),
        "B_im": _w(B_im),
        "C_re": _w(C_re),
        "C_im": _w(C_im),
        "log_dt": _w(log_dt),
        "Dskip": _w(Dskip),
    }

def reference(u, A_re, A_im, B_re, B_im, C_re, C_im, log_dt, Dskip):
    Bsz, L, D = u.shape
    dt = torch.exp(log_dt)[:, None]
    A = A_re + 1j * A_im
    Bc = B_re + 1j * B_im
    Cc = C_re + 1j * C_im
    logdA = dt * A
    dB = dt * Bc
    l = (lambda x, dt: x.to(dt))(torch.arange(L), A_re.dtype)
    P = torch.exp(logdA[:, :, None] * l[None, None, :])
    K = torch.einsum("dn,dnl,dn->dl", Cc, P, dB).real
    L2 = 2 * L
    Kp = _pad(K, ((0, 0), (0, L)))
    up = (lambda x, *d: x.permute(*d))(u, 0, 2, 1)
    up = _pad(up, ((0, 0), (0, 0), (0, L)))
    Kf = (lambda x, axes=(-2,-1): torch.fft.rfft2(x.float(), dim=axes))(Kp[:, None, :], axes=(-2, -1))
    Uf = (lambda x, axes=(-2,-1): torch.fft.rfft2(x.float(), dim=axes))(up[:, :, None, :], axes=(-2, -1))
    Yf = Uf * Kf[None, :, :, :]
    y = (lambda x, s, axes=(-2,-1): torch.fft.irfft2(x, s=s, dim=axes).to(torch.bfloat16))(Yf, (1, L2), axes=(-2, -1))[:, :, 0, :L]
    y = (lambda x, *d: x.permute(*d))(y, 0, 2, 1) + u * Dskip[None, None, :]
    return y
```

```python
import sys

class G:
    def __init__(self):
        self.L = []
    def __call__(self, s):
        for ln in s.strip("\n").split("\n"):
            self.L.append(ln.strip())
    def text(self):
        out = []
        for l in self.L:
            if l.endswith(":") or l.startswith(".") or l.startswith(";"):
                out.append(l)
            else:
                out.append("    " + l)
        return "\n".join(out) + "\n"

def vp(i):
    return f"v[{i}:{i+1}]"
def vq(i):
    return f"v[{i}:{i+3}]"
def aq(i):
    return f"a[{i}:{i+3}]"

RS = 528
NA = 25
WR = 30208
UB = 4 * WR
UCH = 5120; UH = 1280
XB = UB + 4 * UCH
LDS_TOTAL = XB + 4096
CP1 = 4224

S_W, S_XCD, S_IDX, S_M, S_D0, S_D = 3, 4, 5, 6, 7, 8
P_U, P_ARE, P_AIM, P_BRE, P_BIM, P_CRE, P_CIM, P_LDT = 16, 18, 20, 22, 24, 26, 28, 30
P_DSK, P_OUT = 32, 34
S_LDT, S_DSK = 36, 38
S_C8, S_C256, S_LC = 40, 42, 44
S_PLO, S_PHI = 46, 47
S_ODD = 48
S_UT = 50
S_OT = 58
S_T0, S_T1, S_T2, S_T3 = 66, 67, 68, 69
S_EX = 70

V_TID, V_LANE = 0, 1
V_TW, V_AR, V_BR, V_KW, V_KR, V_UR, V_US, V_UG, V_XW, V_XR, V_OG = 2, 3, 4, 5, 6, 7, 8, 9, 10, 11, 12
V_T0, V_T1, V_T2 = 13, 14, 15
V_UST = 16
V_PAR = 32
V_DT = 40
def MB(M): return 44 + 40 * M
R_AL, R_C, R_Z1, R_Z2, R_Z4, R_Z8, R_Z256, R_Y, R_T, R_X, R_E, R_X2, R_X4, R_X6, R_B, R_CC, R_M = [2*i for i in range(17)]
V_DW = 124
V_ACC = 200
V_WIN = 216
V_DF = 232
V_XO = 236
V_KD = 240
V_S = 132
V_CH = 144

def gen(debug=False):
    g = G()
    g("""
s_cmp_ge_u32 s2, 256
s_cbranch_scc1 L_end
s_load_dwordx16 s[16:31], s[0:1], 0
s_load_dwordx4 s[32:35], s[0:1], 64
""")
    if debug:
        g("s_load_dwordx2 s[72:73], s[0:1], 88")
    g(f"""
v_lshrrev_b32 v{V_T0}, 6, v0
v_and_b32 v{V_LANE}, 63, v0
v_readfirstlane_b32 s{S_W}, v{V_T0}
s_and_b32 s{S_XCD}, s2, 7
s_lshr_b32 s{S_IDX}, s2, 3
s_and_b32 s{S_M}, s{S_IDX}, 1
s_lshr_b32 s{S_T0}, s{S_IDX}, 1
s_lshl_b32 s{S_T0}, s{S_T0}, 2
s_lshl_b32 s{S_D0}, s{S_XCD}, 6
s_add_u32 s{S_D0}, s{S_D0}, s{S_T0}
s_add_u32 s{S_D}, s{S_D0}, s{S_W}
""")
    g(f"""
s_lshl_b32 s{S_T0}, s{S_D}, 8
v_lshlrev_b32 v{V_T1}, 2, v{V_LANE}
v_add_u32 v{V_T1}, s{S_T0}, v{V_T1}
v_lshrrev_b32 v{V_UG}, 2, v{V_LANE}
v_lshlrev_b32 v{V_UG}, 5, v{V_UG}
v_and_b32 v{V_T2}, 3, v{V_LANE}
v_lshlrev_b32 v{V_T2}, 1, v{V_T2}
v_add_u32 v{V_UG}, v{V_UG}, v{V_T2}
s_lshl_b32 s{S_T0}, s{S_W}, 3
v_add_u32 v{V_UG}, s{S_T0}, v{V_UG}
v_lshlrev_b32 v{V_UG}, 10, v{V_UG}
s_lshl_b32 s{S_T1}, s{S_D0}, 1
v_add_u32 v{V_UG}, s{S_T1}, v{V_UG}
s_lshl_b32 s{S_T0}, s{S_IDX}, 6
s_lshl_b32 s{S_T2}, s{S_W}, 4
s_add_u32 s{S_T0}, s{S_T0}, s{S_T2}
v_and_b32 v{V_T2}, 15, v{V_LANE}
v_add_u32 v{V_T2}, s{S_T0}, v{V_T2}
v_lshlrev_b32 v{V_T2}, 10, v{V_T2}
s_lshl_b32 s{S_T0}, s{S_XCD}, 7
v_add_u32 v{V_T2}, s{S_T0}, v{V_T2}
s_waitcnt lgkmcnt(0)
""")
    for i, p in enumerate([P_ARE, P_AIM, P_BRE, P_BIM, P_CRE, P_CIM]):
        g(f"global_load_dword v{V_PAR+i}, v{V_T1}, s[{p}:{p+1}]")
    g(f"""
s_add_u32 s{P_LDT}, s{P_LDT}, s{S_T1}
s_addc_u32 s{P_LDT+1}, s{P_LDT+1}, 0
s_add_u32 s{P_DSK}, s{P_DSK}, s{S_T1}
s_addc_u32 s{P_DSK+1}, s{P_DSK+1}, 0
s_load_dwordx2 s[{S_LDT}:{S_LDT+1}], s[{P_LDT}:{P_LDT+1}], 0
s_load_dwordx2 s[{S_DSK}:{S_DSK+1}], s[{P_DSK}:{P_DSK+1}], 0
global_load_dword v{V_PAR+6}, v{V_T2}, s[{P_U}:{P_U+1}]
""")
    for t in range(4):
        if t == 0:
            g(f"s_mov_b32 s{S_UT}, s{P_U}\ns_mov_b32 s{S_UT+1}, s{P_U+1}")
            g(f"s_mov_b32 s{S_OT}, s{P_OUT}\ns_mov_b32 s{S_OT+1}, s{P_OUT+1}")
        else:
            g(f"s_add_u32 s{S_UT+2*t}, s{S_UT+2*t-2}, 0x80000\ns_addc_u32 s{S_UT+2*t+1}, s{S_UT+2*t-1}, 0")
            g(f"s_add_u32 s{S_OT+2*t}, s{S_OT+2*t-2}, 0x80000\ns_addc_u32 s{S_OT+2*t+1}, s{S_OT+2*t-1}, 0")
    def uload(t):
        g(f"global_load_dwordx2 {vp(V_UST+4*t)}, v{V_UG}, s[{S_UT+2*t}:{S_UT+2*t+1}]")
        g(f"global_load_dwordx2 {vp(V_UST+4*t+2)}, v{V_UG}, s[{S_UT+2*t}:{S_UT+2*t+1}] offset:1024")
    uload(0); uload(1)
    g(f"""
s_mul_i32 s{S_T0}, s{S_W}, {WR}
v_lshlrev_b32 v{V_TW}, 3, v{V_LANE}
v_add_u32 v{V_TW}, s{S_T0}, v{V_TW}
v_and_b32 v{V_T0}, 31, v{V_LANE}
v_lshrrev_b32 v{V_T1}, 5, v{V_LANE}
v_lshlrev_b32 v{V_T1}, 4, v{V_T1}
v_add_u32 v{V_T1}, s{S_T0}, v{V_T1}
v_min_u32 v{V_T2}, 24, v{V_T0}
v_mul_u32_u24 v{V_T2}, {RS}, v{V_T2}
v_add_u32 v{V_AR}, v{V_T1}, v{V_T2}
v_mul_u32_u24 v{V_T2}, {RS}, v{V_T0}
v_add_u32 v{V_BR}, v{V_T1}, v{V_T2}
v_add_u32 v{V_BR}, {NA*RS}, v{V_BR}
v_lshlrev_b32 v{V_T0}, 4, v{V_LANE}
s_add_u32 s{S_T1}, s{S_T0}, 1008
v_sub_u32 v{V_KW}, s{S_T1}, v{V_T0}
""")
    g(f"""
v_and_b32 v{V_T0}, 1, v{V_LANE}
v_bfe_u32 v{V_T1}, v{V_LANE}, 1, 3
s_xor_b32 s{S_T1}, s{S_M}, 1
v_xor_b32 v{V_T2}, 1, v{V_T0}
v_and_b32 v{V_T2}, s{S_T1}, v{V_T2}
v_add_u32 v{V_T1}, v{V_T1}, v{V_T2}
v_lshlrev_b32 v{V_T1}, 3, v{V_T1}
v_mul_u32_u24 v{V_KR}, {CP1}, v{V_T0}
v_sub_u32 v{V_KR}, v{V_KR}, v{V_T1}
v_lshrrev_b32 v{V_T1}, 4, v{V_LANE}
v_lshlrev_b32 v{V_T2}, 4, v{V_T1}
v_add_u32 v{V_KR}, v{V_KR}, v{V_T2}
s_add_u32 s{S_T1}, s{S_T0}, 64
v_add_u32 v{V_KR}, s{S_T1}, v{V_KR}
""")
    g(f"""
v_bfe_u32 v{V_T2}, v{V_LANE}, 1, 3
v_lshlrev_b32 v{V_T2}, 2, v{V_T2}
v_xor_b32 v{V_XO}, 1, v{V_T0}
v_mul_u32_u24 v{V_XO}, 3, v{V_XO}
v_add_u32 v{V_XO+1}, 1, v{V_T0}
s_cmp_eq_u32 s{S_M}, 0
s_cselect_b64 vcc, -1, 0
v_cndmask_b32 v{V_XO}, v{V_XO+1}, v{V_XO}, vcc
v_add_u32 v{V_T2}, v{V_T2}, v{V_XO}
v_lshlrev_b32 v{V_T1}, 3, v{V_T1}
v_sub_u32 v{V_DF}, v{V_T2}, v{V_T1}
""")
    g(f"""
v_lshrrev_b32 v{V_T1}, 4, v{V_LANE}
v_mul_u32_u24 v{V_T1}, {UH}, v{V_T1}
v_and_b32 v{V_T0}, 15, v{V_LANE}
v_lshlrev_b32 v{V_T2}, 4, v{V_T0}
v_add_u32 v{V_UR}, v{V_T1}, v{V_T2}
s_mul_i32 s{S_T1}, s{S_W}, {UCH}
s_add_u32 s{S_T1}, s{S_T1}, {UB}
v_add_u32 v{V_UR}, s{S_T1}, v{V_UR}
s_mul_i32 s{S_T1}, s{S_W}, {UH}
s_add_u32 s{S_T1}, s{S_T1}, {UB}
v_lshrrev_b32 v{V_T1}, 4, v{V_LANE}
v_mul_u32_u24 v{V_T1}, {UCH}, v{V_T1}
v_add_u32 v{V_T1}, v{V_T1}, v{V_T2}
v_add_u32 v{V_T1}, s{S_T1}, v{V_T1}
v_mov_b32 v{V_WIN}, 0
v_mov_b32 v{V_WIN+1}, 0
v_mov_b32 v{V_WIN+2}, 0
v_mov_b32 v{V_WIN+3}, 0
ds_write_b128 v{V_T1}, {vq(V_WIN)}
s_add_u32 s{S_T1}, s{S_T1}, 240
v_lshlrev_b32 v{V_US}, 2, v{V_LANE}
v_add_u32 v{V_US}, s{S_T1}, v{V_US}
""")
    g(f"""
v_lshlrev_b32 v{V_T1}, 3, v{V_LANE}
s_lshl_b32 s{S_T1}, s{S_W}, 1
s_add_u32 s{S_T1}, s{S_T1}, {XB}
v_add_u32 v{V_XW}, s{S_T1}, v{V_T1}
s_lshl_b32 s{S_T1}, s{S_W}, 9
s_add_u32 s{S_T1}, s{S_T1}, {XB}
v_add_u32 v{V_XR}, s{S_T1}, v{V_T1}
""")
    g(f"""
s_and_b32 s{S_T1}, s{S_W}, 1
s_xor_b32 s{S_T2}, s{S_T1}, 1
s_mul_i32 s{S_T2}, s{S_T2}, 3
s_add_u32 s{S_T1}, s{S_T1}, 1
s_cmp_eq_u32 s{S_M}, 0
s_cselect_b32 s{S_T1}, s{S_T2}, s{S_T1}
s_lshr_b32 s{S_T2}, s{S_W}, 1
s_lshl_b32 s{S_T2}, s{S_T2}, 2
s_add_u32 s{S_T1}, s{S_T1}, s{S_T2}
v_lshlrev_b32 v{V_OG}, 5, v{V_T0}
v_lshrrev_b32 v{V_T1}, 4, v{V_LANE}
v_lshlrev_b32 v{V_T1}, 3, v{V_T1}
v_add_u32 v{V_OG}, v{V_OG}, v{V_T1}
v_add_u32 v{V_OG}, s{S_T1}, v{V_OG}
v_lshlrev_b32 v{V_OG}, 10, v{V_OG}
s_lshl_b32 s{S_T1}, s{S_D0}, 1
v_add_u32 v{V_OG}, s{S_T1}, v{V_OG}
""")
    g(f"""
s_mov_b32 s{S_C8}, 0x41000000
s_mov_b32 s{S_C8+1}, 0x41000000
s_mov_b32 s{S_C256}, 0x43800000
s_mov_b32 s{S_C256+1}, 0x43800000
s_mov_b32 s{S_LC}, 0x3fb8aa3b
s_mov_b32 s{S_LC+1}, 0x3e22f983
s_mov_b32 s{S_PLO}, 0x05040100
s_mov_b32 s{S_PHI}, 0x07060302
s_mov_b32 s{S_ODD}, 0xaaaaaaaa
s_mov_b32 s{S_ODD+1}, 0xaaaaaaaa
""")
    for t in range(4):
        for r in range(4):
            g(f"v_mov_b32 v{V_ACC+4*t+r}, 0")
    g(f"""
s_waitcnt lgkmcnt(0)
s_lshl_b32 s{S_T0}, s{S_W}, 4
s_lshr_b64 s[{S_LDT}:{S_LDT+1}], s[{S_LDT}:{S_LDT+1}], s{S_T0}
s_lshr_b64 s[{S_DSK}:{S_DSK+1}], s[{S_DSK}:{S_DSK+1}], s{S_T0}
s_lshl_b32 s{S_LDT}, s{S_LDT}, 16
s_and_b32 s{S_DSK}, s{S_DSK}, 0xffff
v_mov_b32 v{V_T0}, s{S_LC}
v_mul_f32 v{V_T1}, s{S_LDT}, v{V_T0}
v_fma_f32 v{V_T2}, s{S_LDT}, v{V_T0}, -v{V_T1}
v_mov_b32 v{V_T0}, 0x32a57060
v_fma_f32 v{V_T2}, s{S_LDT}, v{V_T0}, v{V_T2}
v_exp_f32 v{V_T1}, v{V_T1}
v_mul_f32 v{V_T2}, 0x3f317218, v{V_T2}
v_fma_f32 v{V_T1}, v{V_T1}, v{V_T2}, v{V_T1}
v_cvt_pk_bf16_f32 v{V_T1}, v{V_T1}, v{V_T1}
v_lshlrev_b32 v{V_DT+2}, 16, v{V_T1}
v_mov_b32 v{V_DT+3}, v{V_DT+2}
v_pk_mul_f32 {vp(V_DT)}, {vp(V_DT+2)}, s[{S_LC}:{S_LC+1}]
""")
    g(f"""
v_and_b32 v{V_T0}, 1, v{V_DF}
v_lshlrev_b32 v{V_T0}, 4, v{V_T0}
v_mov_b32 v{V_T1}, s{S_DSK}
v_lshlrev_b32 v{V_T1}, v{V_T0}, v{V_T1}
v_ashrrev_i32 v{V_T2}, 1, v{V_DF}
""")
    for d in range(4):
        g(f"v_cmp_eq_u32 vcc, {d}, v{V_T2}\ns_nop 1\nv_cndmask_b32 v{V_DF+d}, 0, v{V_T1}, vcc")
    g("s_waitcnt vmcnt(5)")
    for M in (0, 1):
        b = MB(M)
        def unp(dst, src):
            if M == 0: g(f"v_lshlrev_b32 v{dst}, 16, v{src}")
            else: g(f"v_and_b32 v{dst}, 0xffff0000, v{src}")
        unp(b+R_AL, V_PAR); unp(b+R_AL+1, V_PAR+1)
        unp(b+R_B, V_PAR+2); unp(b+R_B+1, V_PAR+3)
        unp(b+R_CC, V_PAR+4); unp(b+R_CC+1, V_PAR+5)
    def cmul(dst, a, bb, tmp, conj=False):
        g(f"v_pk_mul_f32 {vp(tmp)}, {vp(a)}, {vp(bb)} op_sel_hi:[1,0]")
        if not conj:
            g(f"v_pk_fma_f32 {vp(dst)}, {vp(a)}, {vp(bb)}, {vp(tmp)} op_sel:[1,1,0] op_sel_hi:[0,1,1] neg_lo:[0,1,0]")
        else:
            g(f"v_pk_fma_f32 {vp(dst)}, {vp(a)}, {vp(bb)}, {vp(tmp)} op_sel:[1,1,0] op_sel_hi:[0,1,1] neg_hi:[0,1,0]")
    def both(f):
        for M in (0, 1): f(MB(M))
    both(lambda b: g(f"v_pk_mul_f32 {vp(b+R_AL)}, {vp(b+R_AL)}, {vp(V_DT)}"))
    both(lambda b: cmul(b+R_C, b+R_CC, b+R_B, b+R_T))
    both(lambda b: g(f"v_pk_mul_f32 {vp(b+R_C)}, {vp(b+R_C)}, {vp(V_DT+2)} neg_hi:[1,0]"))
    def direct(dst_off, scale):
        if scale is None:
            both(lambda b: g(f"v_exp_f32 v{b+R_M}, v{b+R_AL}"))
            both(lambda b: g(f"v_fract_f32 v{b+R_T+1}, v{b+R_AL+1}"))
        else:
            both(lambda b: g(f"v_pk_mul_f32 {vp(b+R_T)}, {vp(b+R_AL)}, s[{scale}:{scale+1}]"))
            both(lambda b: g(f"v_exp_f32 v{b+R_M}, v{b+R_T}"))
            both(lambda b: g(f"v_fract_f32 v{b+R_T+1}, v{b+R_T+1}"))
        both(lambda b: g(f"v_cos_f32 v{b+dst_off}, v{b+R_T+1}"))
        both(lambda b: g(f"v_sin_f32 v{b+dst_off+1}, v{b+R_T+1}"))
        g("s_nop 0")
        both(lambda b: g(f"v_pk_mul_f32 {vp(b+dst_off)}, {vp(b+dst_off)}, {vp(b+R_M)} op_sel_hi:[1,0]"))
    direct(R_Z8, S_C8)
    direct(R_Z1, None)
    direct(R_Z256, S_C256)
    wcount = [0]
    def twrite(src_off, positions):
        p = V_DW + 2 * (wcount[0] % 4); wcount[0] += 1
        for M in (0, 1):
            b = MB(M)
            g(f"v_cvt_pk_bf16_f32 v{p+M}, v{b+src_off}, v{b+src_off+1}")
        for pos in positions:
            g(f"ds_write_b64 v{V_TW}, {vp(p)} offset:{pos*RS}")
    g(f"v_mov_b32 v{V_DW}, 0x00003f80\nv_mov_b32 v{V_DW+1}, 0x00003f80")
    g(f"ds_write_b64 v{V_TW}, {vp(V_DW)} offset:{NA*RS}")
    wcount[0] = 1
    twrite(R_Z8, [NA+1])
    both(lambda b: cmul(b+R_Y, b+R_Z8, b+R_Z8, b+R_T))
    twrite(R_Y, [NA+2])
    for j in range(3, 32):
        both(lambda b: cmul(b+R_Y, b+R_Y, b+R_Z8, b+R_T))
        twrite(R_Y, [NA+j])
        if j == 12: uload(2)
    rowpos = {0:[0],1:[1],2:[2],3:[3],256:[4,5],258:[6],260:[7,12,13],4:[8],5:[9],6:[10],7:[11],262:[14],264:[15],
              512:[16],516:[17],1024:[18],1536:[19],768:[20],772:[21],1280:[22],1792:[23],2048:[24]}
    both(lambda b: cmul(b+R_Z2, b+R_Z1, b+R_Z1, b+R_T))
    both(lambda b: cmul(b+R_Z4, b+R_Z2, b+R_Z2, b+R_T))
    twrite(R_C, rowpos[0])
    prev = R_C
    for r in range(1, 8):
        dst = {2:R_X2, 4:R_X4, 6:R_X6}.get(r, R_X)
        both(lambda b: cmul(b+dst, b+prev, b+R_Z1, b+R_T, conj=True))
        twrite(dst, rowpos[r])
        prev = dst
    uload(3)
    both(lambda b: cmul(b+R_E, b+R_C, b+R_Z256, b+R_T, conj=True))
    twrite(R_E, rowpos[256])
    for src, r in ((R_X2, 258), (R_X4, 260), (R_X6, 262)):
        both(lambda b: cmul(b+R_X, b+src, b+R_Z256, b+R_T, conj=True))
        twrite(R_X, rowpos[r])
    both(lambda b: cmul(b+R_X, b+R_E, b+R_Z8, b+R_T, conj=True))
    twrite(R_X, rowpos[264])
    for k in range(2, 9):
        both(lambda b: cmul(b+R_E, b+R_E, b+R_Z256, b+R_T, conj=True))
        twrite(R_E, rowpos[256*k])
        if k in (2, 3):
            both(lambda b: cmul(b+R_X, b+R_E, b+R_Z4, b+R_T, conj=True))
            twrite(R_X, rowpos[256*k+4])
    for r in range(16):
        g(f"v_mov_b32 v{V_KD+r}, 0")
    g("s_waitcnt lgkmcnt(0)")
    def rd(kb):
        g(f"ds_read_b128 {aq(4*kb)}, v{V_AR} offset:{32*kb}")
        g(f"ds_read_b128 {aq(64+4*kb)}, v{V_BR} offset:{32*kb}")
    PF = 6
    for kb in range(PF): rd(kb)
    issued = PF
    for kb in range(16):
        outstanding_after = 2 * (issued - kb - 1)
        g(f"s_waitcnt lgkmcnt({outstanding_after})")
        g(f"v_mfma_f32_32x32x16_bf16 v[{V_KD}:{V_KD+15}], {aq(4*kb)}, {aq(64+4*kb)}, v[{V_KD}:{V_KD+15}]")
        if issued < 16:
            rd(issued); issued += 1
    def stage(t):
        b = V_UST + 4*t
        g(f"v_perm_b32 v{V_T0}, v{b+2}, v{b}, s{S_PLO}")
        g(f"v_perm_b32 v{V_T1}, v{b+2}, v{b}, s{S_PHI}")
        g(f"v_perm_b32 v{V_T2}, v{b+3}, v{b+1}, s{S_PLO}")
        g(f"v_perm_b32 v{V_XO}, v{b+3}, v{b+1}, s{S_PHI}")
        for c, r in enumerate((V_T0, V_T1, V_T2, V_XO)):
            g(f"ds_write_b32 v{V_US}, v{r} offset:{UCH*c + 256*t}")
    g("s_waitcnt vmcnt(4)")
    stage(0); stage(1)
    g("s_nop 7")
    D = V_KD
    S0, S1, S2, S8, S10, S11, T10, T11 = V_S, V_S+1, V_S+2, V_S+3, V_S+4, V_S+5, V_S+6, V_S+7
    def shift(dst, cur, nxt):
        g(f"v_mov_b32_dpp v{dst}, v{nxt} wave_rol:1 row_mask:0xf bank_mask:0xf")
        g(f"v_mov_b32_dpp v{dst}, v{cur} wave_shl:1 row_mask:0xf bank_mask:0xf")
    shift(S0, D+0, D+8); shift(S1, D+1, D+8); shift(S2, D+2, D+8)
    shift(S8, D+8, D+10); shift(S10, D+10, D+11); shift(S11, D+11, D+12)
    g(f"v_cndmask_b32 v{T10}, v{D+10}, v{S10}, s[{S_ODD}:{S_ODD+1}]")
    g(f"v_cndmask_b32 v{T11}, v{D+11}, v{S11}, s[{S_ODD}:{S_ODD+1}]")
    def val(p, beta):
        if p == 0: return D+beta if beta <= 7 else [S0, S1, S2][beta-8]
        if p == 1: return D+8 if beta <= 2 else (D+9 if beta <= 5 else S8)
        v, S, T = (D+10, S10, T10) if p == 2 else (D+11, S11, T11)
        return v if beta <= 3 else (T if beta == 4 else S)
    def epi(m):
        n = 0
        for e in (0, 1):
            rho = 2*m + e
            for p in range(4):
                c = V_CH + 4 * (n % 4); n += 1
                for d in range(4):
                    g(f"v_cvt_pk_bf16_f32 v{c+d}, v{val(p, rho+7-2*d)}, v{val(p, rho+6-2*d)}")
                g(f"ds_write_b128 v{V_KW}, {vq(c)} offset:{e*CP1 + 1024*(3-p)}")
        g(f"s_mul_i32 s{S_T0}, s{S_W}, {WR}")
        g(f"v_lshlrev_b32 v{V_T0}, 4, v{V_LANE}")
        g(f"v_add_u32 v{V_T0}, s{S_T0}, v{V_T0}")
        g(f"s_mov_b64 exec, 15")
        for r in range(4): g(f"v_mov_b32 v{V_CH+r}, 0")
        g(f"ds_write_b128 v{V_T0}, {vq(V_CH)} offset:4096")
        g(f"ds_write_b128 v{V_T0}, {vq(V_CH)} offset:{CP1+4096}")
        g(f"s_mov_b64 exec, 1")
        for e in (0, 1):
            rho = 2*m + e
            if rho == 0: continue
            def kv(i): return f"v{D+i}" if i >= 0 else "0"
            g(f"v_cvt_pk_bf16_f32 v{V_CH+4}, {kv(rho-1)}, {kv(rho-2)}")
            g(f"v_cvt_pk_bf16_f32 v{V_CH+5}, {kv(rho-3)}, {kv(rho-4)}")
            g(f"ds_write_b64 v{V_T0}, {vp(V_CH+4)} offset:{e*CP1+4096}")
        g(f"s_mov_b64 exec, -1")
    g(f"s_cmp_eq_u32 s{S_M}, 0\ns_cbranch_scc0 L_epi1")
    epi(0)
    g("s_branch L_epi_done\nL_epi1:")
    epi(1)
    g("L_epi_done:")
    if debug:
        g("s_waitcnt lgkmcnt(0)")
        g(f"s_lshl_b32 s{S_T0}, s2, 2\ns_add_u32 s{S_T0}, s{S_T0}, s{S_W}\ns_lshl_b32 s{S_T0}, s{S_T0}, 14")
        g(f"s_add_u32 s74, s72, s{S_T0}\ns_addc_u32 s75, s73, 0")
        g(f"s_mul_i32 s{S_T1}, s{S_W}, {WR}")
        g(f"v_lshlrev_b32 v{V_T0}, 4, v{V_LANE}\nv_add_u32 v{V_T1}, s{S_T1}, v{V_T0}")
        for i in range(9):
            g(f"ds_read_b128 {vq(V_CH)}, v{V_T1} offset:{1024*i}\ns_waitcnt lgkmcnt(0)")
            g(f"global_store_dwordx4 v{V_T0}, {vq(V_CH)}, s[74:75] offset:{0}")
            g(f"v_add_u32 v{V_T0}, 1024, v{V_T0}\ns_waitcnt vmcnt(0)")
    g("s_waitcnt lgkmcnt(0)\ns_barrier")
    jobs = []
    for W in range(-15, 49):
        ts = [t for t in range(4) if 16*t - W >= 0]
        for t in ts:
            jobs.append(("m", t, 16*t - W, W))
        if W % 16 == 0 and W >= 0:
            jobs.append(("d", W//16, None, W))
            jobs.append(("ev", W//16, None, W))
    loaded_k = set(); loaded_w = set()
    reads = []
    for ji, j in enumerate(jobs):
        if j[0] in ("m", "d"):
            W = j[3]
            if W not in loaded_w:
                loaded_w.add(W)
                reads.append((ji, "w", W))
            if j[0] == "m" and j[2] not in loaded_k:
                loaded_k.add(j[2]); reads.append((ji, "k", j[2]))
    def win_reg(W): return V_WIN + 4 * ((W + 15) % 4)
    last_use_w = {}
    for ji, j in enumerate(jobs):
        if j[0] in ("m", "d"): last_use_w[j[3]] = ji
    ev_job = {j[1]: ji for ji, j in enumerate(jobs) if j[0] == "ev"}
    def window_ok(W, ji):
        if W - 4 >= -15 and last_use_w[W-4] >= ji: return False
        tile = 0 if W <= 0 else (W + 15) // 16
        if tile >= 2 and ji <= ev_job[tile-2]: return False
        return True
    q = []
    rp = 0
    done_tag = {}
    def n_instr(r): return 1 if r[1] == "w" else 2
    def issue(r):
        if r[1] == "w":
            W = r[2]
            g(f"ds_read_b128 {vq(win_reg(W))}, v{V_UR} offset:{16*(W+15)}")
            q.append(("w", W))
        else:
            s_ = r[2]
            g(f"ds_read_b64 a[{4*s_}:{4*s_+1}], v{V_KR} offset:{64*(63-s_)}")
            g(f"ds_read_b64 a[{4*s_+2}:{4*s_+3}], v{V_KR} offset:{64*(63-s_)+8}")
            q.append(("k", s_)); q.append(("k", s_))
    waited = 0
    def need(tags):
        nonlocal waited
        last = -1
        for i, tg in enumerate(q):
            if tg in tags: last = i
        if last >= waited:
            g(f"s_waitcnt lgkmcnt({len(q) - 1 - last})")
            waited = last + 1
    LOOK = 8
    for ji, j in enumerate(jobs):
        while rp < len(reads) and reads[rp][0] <= ji + LOOK and (len(q) - waited) + n_instr(reads[rp]) <= 14:
            r = reads[rp]
            if r[1] == "w" and not window_ok(r[2], ji): break
            issue(r); rp += 1
        if j[0] == "m":
            t, sig, W = j[1], j[2], j[3]
            assert ("w", W) in q and ("k", sig) in q, (j,)
            need({("w", W), ("k", sig)})
            acc = vq(V_ACC + 4*t)
            g(f"v_mfma_f32_16x16x32_bf16 {acc}, {aq(4*sig)}, {vq(win_reg(W))}, {acc}")
        elif j[0] == "d":
            t, W = j[1], j[3]
            need({("w", W)})
            acc = vq(V_ACC + 4*t)
            g(f"v_mfma_f32_16x16x32_bf16 {acc}, {vq(V_DF)}, {vq(win_reg(W))}, {acc}")
        else:
            t = j[1]
            a = V_ACC + 4*t
            if t + 2 <= 3:
                g(f"s_waitcnt vmcnt({2 if t == 0 else 0 + 1})")
                stage(t + 2)
            g("s_nop 7")
            g(f"v_cvt_pk_bf16_f32 v{V_XO}, v{a}, v{a+1}")
            g(f"v_cvt_pk_bf16_f32 v{V_XO+1}, v{a+2}, v{a+3}")
            xb = 2048 * (t & 1)
            g(f"ds_write_b16 v{V_XW}, v{V_XO} offset:{xb}")
            g(f"ds_write_b16_d16_hi v{V_XW}, v{V_XO} offset:{xb+512}")
            g(f"ds_write_b16 v{V_XW}, v{V_XO+1} offset:{xb+1024}")
            g(f"ds_write_b16_d16_hi v{V_XW}, v{V_XO+1} offset:{xb+1536}")
            g("s_waitcnt lgkmcnt(0)\ns_barrier")
            g(f"ds_read_b64 {vp(V_XO+2)}, v{V_XR} offset:{xb}")
            g("s_waitcnt lgkmcnt(0)")
            waited = len(q)
            g(f"global_store_dwordx2 v{V_OG}, {vp(V_XO+2)}, s[{S_OT+2*t}:{S_OT+2*t+1}]")
    assert rp == len(reads)
    g("L_end:\ns_endpgm")
    return g

HEADER = """; Kernarg layout (96 bytes): u, A_re, A_im, B_re, B_im, C_re, C_im, log_dt, Dskip, out, debug, ws (8 bytes each)
; @launch grid=(256,1,1) block=(256,1,1) lds=%d
.amdgcn_target "amdgcn-amd-amdhsa--gfx950"
.text
.globl standalone__ssm_conv_s4__prompt_kernel
.p2align 8
.type standalone__ssm_conv_s4__prompt_kernel,@function
standalone__ssm_conv_s4__prompt_kernel:
""" % LDS_TOTAL
FOOTER = """.section .rodata,"a"
.p2align 6
.amdhsa_kernel standalone__ssm_conv_s4__prompt_kernel
  .amdhsa_next_free_vgpr 512
  .amdhsa_next_free_sgpr 80
  .amdhsa_accum_offset 256
  .amdhsa_group_segment_fixed_size 0
  .amdhsa_kernarg_size 96
  .amdhsa_user_sgpr_count 2
  .amdhsa_user_sgpr_kernarg_segment_ptr 1
  .amdhsa_system_sgpr_workgroup_id_x 1
.end_amdhsa_kernel
"""
if __name__ == "__main__":
    out = sys.argv[1]
    dbg = len(sys.argv) > 2 and sys.argv[2] == "debug"
    g = gen(dbg)
    open(out, "w").write(HEADER + g.text() + FOOTER)
    print("LDS", LDS_TOTAL, "lines", len(g.L))
```

```python
import sys

class G:
    def __init__(self):
        self.L = []
    def __call__(self, s):
        for ln in s.strip("\n").split("\n"):
            self.L.append(ln.strip())
    def text(self):
        out = []
        for l in self.L:
            if l.endswith(":") or l.startswith(".") or l.startswith(";"):
                out.append(l)
            else:
                out.append("    " + l)
        return "\n".join(out) + "\n"

def vp(i):
    return f"v[{i}:{i+1}]"
def vq(i):
    return f"v[{i}:{i+3}]"
def aq(i):
    return f"a[{i}:{i+3}]"

RS = 528
NA = 25
WR = 30208
UB = 4 * WR
UCH = 5120; UH = 1280
XB = UB + 4 * UCH
LDS_TOTAL = XB + 4096
CP1 = 4224

S_W, S_XCD, S_IDX, S_M, S_D0, S_D = 3, 4, 5, 6, 7, 8
P_U, P_ARE, P_AIM, P_BRE, P_BIM, P_CRE, P_CIM, P_LDT = 16, 18, 20, 22, 24, 26, 28, 30
P_DSK, P_OUT = 32, 34
S_LDT, S_DSK = 36, 38
S_C8, S_C256, S_LC = 40, 42, 44
S_PLO, S_PHI = 46, 47
S_ODD = 48
S_UT = 50
S_OT = 58
S_T0, S_T1, S_T2, S_T3 = 66, 67, 68, 69
S_EX = 70

V_TID, V_LANE = 0, 1
V_TW, V_AR, V_BR, V_KW, V_KR, V_UR, V_US, V_UG, V_XW, V_XR, V_OG = 2, 3, 4, 5, 6, 7, 8, 9, 10, 11, 12
V_T0, V_T1, V_T2 = 13, 14, 15
V_UST = 16
V_PAR = 32
V_DT = 40
def MB(M): return 44 + 40 * M
R_AL, R_C, R_Z1, R_Z2, R_Z4, R_Z8, R_Z256, R_Y, R_T, R_X, R_E, R_X2, R_X4, R_X6, R_B, R_CC, R_M = [2*i for i in range(17)]
V_DW = 124
V_ACC = 200
V_WIN = 216
V_DF = 232
V_XO = 236
V_KD = 240
V_S = 132
V_CH = 144

import os
OPT = os.environ.get('OPT','').split(',')
def gen(debug=False, stamps=False):
    g = G()
    nst = [0]
    def stamp():
        if stamps:
            g(f"s_memtime s[{76+2*nst[0]}:{77+2*nst[0]}]")
            nst[0] += 1
    if stamps:
        g("s_memrealtime s[72:73]")
    stamp()
    g("""
s_cmp_ge_u32 s2, 256
s_cbranch_scc1 L_end
s_load_dwordx16 s[16:31], s[0:1], 0
s_load_dwordx4 s[32:35], s[0:1], 64
""")
    if debug:
        g("s_load_dwordx2 s[72:73], s[0:1], 88")
    g(f"""
v_lshrrev_b32 v{V_T0}, 6, v0
v_and_b32 v{V_LANE}, 63, v0
v_readfirstlane_b32 s{S_W}, v{V_T0}
s_and_b32 s{S_XCD}, s2, 7
s_lshr_b32 s{S_IDX}, s2, 3
s_and_b32 s{S_M}, s{S_IDX}, 1
s_lshr_b32 s{S_T0}, s{S_IDX}, 1
s_lshl_b32 s{S_T0}, s{S_T0}, 2
s_lshl_b32 s{S_D0}, s{S_XCD}, 6
s_add_u32 s{S_D0}, s{S_D0}, s{S_T0}
s_add_u32 s{S_D}, s{S_D0}, s{S_W}
""")
    g(f"""
s_lshl_b32 s{S_T0}, s{S_D}, 8
v_lshlrev_b32 v{V_T1}, 2, v{V_LANE}
v_add_u32 v{V_T1}, s{S_T0}, v{V_T1}
v_lshrrev_b32 v{V_UG}, 2, v{V_LANE}
v_lshlrev_b32 v{V_UG}, 5, v{V_UG}
v_and_b32 v{V_T2}, 3, v{V_LANE}
v_lshlrev_b32 v{V_T2}, 1, v{V_T2}
v_add_u32 v{V_UG}, v{V_UG}, v{V_T2}
s_lshl_b32 s{S_T0}, s{S_W}, 3
v_add_u32 v{V_UG}, s{S_T0}, v{V_UG}
v_lshlrev_b32 v{V_UG}, 10, v{V_UG}
s_lshl_b32 s{S_T1}, s{S_D0}, 1
v_add_u32 v{V_UG}, s{S_T1}, v{V_UG}
s_lshl_b32 s{S_T0}, s{S_IDX}, 6
s_lshl_b32 s{S_T2}, s{S_W}, 4
s_add_u32 s{S_T0}, s{S_T0}, s{S_T2}
v_and_b32 v{V_T2}, 15, v{V_LANE}
v_add_u32 v{V_T2}, s{S_T0}, v{V_T2}
v_lshlrev_b32 v{V_T2}, 10, v{V_T2}
s_lshl_b32 s{S_T0}, s{S_XCD}, 7
v_add_u32 v{V_T2}, s{S_T0}, v{V_T2}
s_waitcnt lgkmcnt(0)
""")
    stamp()
    for i, p in enumerate([P_ARE, P_AIM, P_BRE, P_BIM, P_CRE, P_CIM]):
        g(f"global_load_dword v{V_PAR+i}, v{V_T1}, s[{p}:{p+1}]")
    g(f"""
s_add_u32 s{P_LDT}, s{P_LDT}, s{S_T1}
s_addc_u32 s{P_LDT+1}, s{P_LDT+1}, 0
s_add_u32 s{P_DSK}, s{P_DSK}, s{S_T1}
s_addc_u32 s{P_DSK+1}, s{P_DSK+1}, 0
s_load_dwordx2 s[{S_LDT}:{S_LDT+1}], s[{P_LDT}:{P_LDT+1}], 0
s_load_dwordx2 s[{S_DSK}:{S_DSK+1}], s[{P_DSK}:{P_DSK+1}], 0
global_load_dword v{V_PAR+6}, v{V_T2}, s[{P_U}:{P_U+1}]
""")
    for t in range(4):
        if t == 0:
            g(f"s_mov_b32 s{S_UT}, s{P_U}\ns_mov_b32 s{S_UT+1}, s{P_U+1}")
            g(f"s_mov_b32 s{S_OT}, s{P_OUT}\ns_mov_b32 s{S_OT+1}, s{P_OUT+1}")
        else:
            g(f"s_add_u32 s{S_UT+2*t}, s{S_UT+2*t-2}, 0x80000\ns_addc_u32 s{S_UT+2*t+1}, s{S_UT+2*t-1}, 0")
            g(f"s_add_u32 s{S_OT+2*t}, s{S_OT+2*t-2}, 0x80000\ns_addc_u32 s{S_OT+2*t+1}, s{S_OT+2*t-1}, 0")
    def uload(t):
        g(f"global_load_dwordx2 {vp(V_UST+4*t)}, v{V_UG}, s[{S_UT+2*t}:{S_UT+2*t+1}]")
        g(f"global_load_dwordx2 {vp(V_UST+4*t+2)}, v{V_UG}, s[{S_UT+2*t}:{S_UT+2*t+1}] offset:1024")
    uload(0); uload(1)
    g(f"""
s_mul_i32 s{S_T0}, s{S_W}, {WR}
v_lshlrev_b32 v{V_TW}, 3, v{V_LANE}
v_add_u32 v{V_TW}, s{S_T0}, v{V_TW}
v_and_b32 v{V_T0}, 31, v{V_LANE}
v_lshrrev_b32 v{V_T1}, 5, v{V_LANE}
v_lshlrev_b32 v{V_T1}, 4, v{V_T1}
v_add_u32 v{V_T1}, s{S_T0}, v{V_T1}
v_min_u32 v{V_T2}, 24, v{V_T0}
v_mul_u32_u24 v{V_T2}, {RS}, v{V_T2}
v_add_u32 v{V_AR}, v{V_T1}, v{V_T2}
v_mul_u32_u24 v{V_T2}, {RS}, v{V_T0}
v_add_u32 v{V_BR}, v{V_T1}, v{V_T2}
v_add_u32 v{V_BR}, {NA*RS}, v{V_BR}
v_lshlrev_b32 v{V_T0}, 4, v{V_LANE}
s_add_u32 s{S_T1}, s{S_T0}, 1008
v_sub_u32 v{V_KW}, s{S_T1}, v{V_T0}
""")
    g(f"""
v_and_b32 v{V_T0}, 1, v{V_LANE}
v_bfe_u32 v{V_T1}, v{V_LANE}, 1, 3
s_xor_b32 s{S_T1}, s{S_M}, 1
v_xor_b32 v{V_T2}, 1, v{V_T0}
v_and_b32 v{V_T2}, s{S_T1}, v{V_T2}
v_add_u32 v{V_T1}, v{V_T1}, v{V_T2}
v_lshlrev_b32 v{V_T1}, 3, v{V_T1}
v_mul_u32_u24 v{V_KR}, {CP1}, v{V_T0}
v_sub_u32 v{V_KR}, v{V_KR}, v{V_T1}
v_lshrrev_b32 v{V_T1}, 4, v{V_LANE}
v_lshlrev_b32 v{V_T2}, 4, v{V_T1}
v_add_u32 v{V_KR}, v{V_KR}, v{V_T2}
s_add_u32 s{S_T1}, s{S_T0}, 64
v_add_u32 v{V_KR}, s{S_T1}, v{V_KR}
""")
    g(f"""
v_bfe_u32 v{V_T2}, v{V_LANE}, 1, 3
v_lshlrev_b32 v{V_T2}, 2, v{V_T2}
v_xor_b32 v{V_XO}, 1, v{V_T0}
v_mul_u32_u24 v{V_XO}, 3, v{V_XO}
v_add_u32 v{V_XO+1}, 1, v{V_T0}
s_cmp_eq_u32 s{S_M}, 0
s_cselect_b64 vcc, -1, 0
v_cndmask_b32 v{V_XO}, v{V_XO+1}, v{V_XO}, vcc
v_add_u32 v{V_T2}, v{V_T2}, v{V_XO}
v_lshlrev_b32 v{V_T1}, 3, v{V_T1}
v_sub_u32 v{V_DF}, v{V_T2}, v{V_T1}
""")
    g(f"""
v_lshrrev_b32 v{V_T1}, 4, v{V_LANE}
v_mul_u32_u24 v{V_T1}, {UH}, v{V_T1}
v_and_b32 v{V_T0}, 15, v{V_LANE}
v_lshlrev_b32 v{V_T2}, 4, v{V_T0}
v_add_u32 v{V_UR}, v{V_T1}, v{V_T2}
s_mul_i32 s{S_T1}, s{S_W}, {UCH}
s_add_u32 s{S_T1}, s{S_T1}, {UB}
v_add_u32 v{V_UR}, s{S_T1}, v{V_UR}
s_mul_i32 s{S_T1}, s{S_W}, {UH}
s_add_u32 s{S_T1}, s{S_T1}, {UB}
v_lshrrev_b32 v{V_T1}, 4, v{V_LANE}
v_mul_u32_u24 v{V_T1}, {UCH}, v{V_T1}
v_add_u32 v{V_T1}, v{V_T1}, v{V_T2}
v_add_u32 v{V_T1}, s{S_T1}, v{V_T1}
v_mov_b32 v{V_WIN}, 0
v_mov_b32 v{V_WIN+1}, 0
v_mov_b32 v{V_WIN+2}, 0
v_mov_b32 v{V_WIN+3}, 0
ds_write_b128 v{V_T1}, {vq(V_WIN)}
s_add_u32 s{S_T1}, s{S_T1}, 240
v_lshlrev_b32 v{V_US}, 2, v{V_LANE}
v_add_u32 v{V_US}, s{S_T1}, v{V_US}
""")
    g(f"""
v_lshlrev_b32 v{V_T1}, 3, v{V_LANE}
s_lshl_b32 s{S_T1}, s{S_W}, 1
s_add_u32 s{S_T1}, s{S_T1}, {XB}
v_add_u32 v{V_XW}, s{S_T1}, v{V_T1}
s_lshl_b32 s{S_T1}, s{S_W}, 9
s_add_u32 s{S_T1}, s{S_T1}, {XB}
v_add_u32 v{V_XR}, s{S_T1}, v{V_T1}
""")
    g(f"""
s_and_b32 s{S_T1}, s{S_W}, 1
s_xor_b32 s{S_T2}, s{S_T1}, 1
s_mul_i32 s{S_T2}, s{S_T2}, 3
s_add_u32 s{S_T1}, s{S_T1}, 1
s_cmp_eq_u32 s{S_M}, 0
s_cselect_b32 s{S_T1}, s{S_T2}, s{S_T1}
s_lshr_b32 s{S_T2}, s{S_W}, 1
s_lshl_b32 s{S_T2}, s{S_T2}, 2
s_add_u32 s{S_T1}, s{S_T1}, s{S_T2}
v_lshlrev_b32 v{V_OG}, 5, v{V_T0}
v_lshrrev_b32 v{V_T1}, 4, v{V_LANE}
v_lshlrev_b32 v{V_T1}, 3, v{V_T1}
v_add_u32 v{V_OG}, v{V_OG}, v{V_T1}
v_add_u32 v{V_OG}, s{S_T1}, v{V_OG}
v_lshlrev_b32 v{V_OG}, 10, v{V_OG}
s_lshl_b32 s{S_T1}, s{S_D0}, 1
v_add_u32 v{V_OG}, s{S_T1}, v{V_OG}
""")
    g(f"""
s_mov_b32 s{S_C8}, 0x41000000
s_mov_b32 s{S_C8+1}, 0x41000000
s_mov_b32 s{S_C256}, 0x43800000
s_mov_b32 s{S_C256+1}, 0x43800000
s_mov_b32 s{S_LC}, 0x3fb8aa3b
s_mov_b32 s{S_LC+1}, 0x3e22f983
s_mov_b32 s{S_PLO}, 0x05040100
s_mov_b32 s{S_PHI}, 0x07060302
s_mov_b32 s{S_ODD}, 0xaaaaaaaa
s_mov_b32 s{S_ODD+1}, 0xaaaaaaaa
""")
    for t in range(4):
        for r in range(4):
            g(f"v_mov_b32 v{V_ACC+4*t+r}, 0")
    g(f"""
s_waitcnt lgkmcnt(0)
s_lshl_b32 s{S_T0}, s{S_W}, 4
s_lshr_b64 s[{S_LDT}:{S_LDT+1}], s[{S_LDT}:{S_LDT+1}], s{S_T0}
s_lshr_b64 s[{S_DSK}:{S_DSK+1}], s[{S_DSK}:{S_DSK+1}], s{S_T0}
s_lshl_b32 s{S_LDT}, s{S_LDT}, 16
s_and_b32 s{S_DSK}, s{S_DSK}, 0xffff
v_mov_b32 v{V_T0}, s{S_LC}
v_mul_f32 v{V_T1}, s{S_LDT}, v{V_T0}
v_fma_f32 v{V_T2}, s{S_LDT}, v{V_T0}, -v{V_T1}
v_mov_b32 v{V_T0}, 0x32a57060
v_fma_f32 v{V_T2}, s{S_LDT}, v{V_T0}, v{V_T2}
v_exp_f32 v{V_T1}, v{V_T1}
v_mul_f32 v{V_T2}, 0x3f317218, v{V_T2}
v_fma_f32 v{V_T1}, v{V_T1}, v{V_T2}, v{V_T1}
v_cvt_pk_bf16_f32 v{V_T1}, v{V_T1}, v{V_T1}
v_lshlrev_b32 v{V_DT+2}, 16, v{V_T1}
v_mov_b32 v{V_DT+3}, v{V_DT+2}
v_pk_mul_f32 {vp(V_DT)}, {vp(V_DT+2)}, s[{S_LC}:{S_LC+1}]
""")
    g(f"""
v_and_b32 v{V_T0}, 1, v{V_DF}
v_lshlrev_b32 v{V_T0}, 4, v{V_T0}
v_mov_b32 v{V_T1}, s{S_DSK}
v_lshlrev_b32 v{V_T1}, v{V_T0}, v{V_T1}
v_ashrrev_i32 v{V_T2}, 1, v{V_DF}
""")
    for d in range(4):
        g(f"v_cmp_eq_u32 vcc, {d}, v{V_T2}\ns_nop 1\nv_cndmask_b32 v{V_DF+d}, 0, v{V_T1}, vcc")
    g("s_waitcnt vmcnt(5)")
    stamp()
    for M in (0, 1):
        b = MB(M)
        def unp(dst, src):
            if M == 0: g(f"v_lshlrev_b32 v{dst}, 16, v{src}")
            else: g(f"v_and_b32 v{dst}, 0xffff0000, v{src}")
        unp(b+R_AL, V_PAR); unp(b+R_AL+1, V_PAR+1)
        unp(b+R_B, V_PAR+2); unp(b+R_B+1, V_PAR+3)
        unp(b+R_CC, V_PAR+4); unp(b+R_CC+1, V_PAR+5)
    def cmul(dst, a, bb, tmp, conj=False):
        g(f"v_pk_mul_f32 {vp(tmp)}, {vp(a)}, {vp(bb)} op_sel_hi:[1,0]")
        if not conj:
            g(f"v_pk_fma_f32 {vp(dst)}, {vp(a)}, {vp(bb)}, {vp(tmp)} op_sel:[1,1,0] op_sel_hi:[0,1,1] neg_lo:[0,1,0]")
        else:
            g(f"v_pk_fma_f32 {vp(dst)}, {vp(a)}, {vp(bb)}, {vp(tmp)} op_sel:[1,1,0] op_sel_hi:[0,1,1] neg_hi:[0,1,0]")
    def both(f):
        for M in (0, 1): f(MB(M))
    both(lambda b: g(f"v_pk_mul_f32 {vp(b+R_AL)}, {vp(b+R_AL)}, {vp(V_DT)}"))
    both(lambda b: cmul(b+R_C, b+R_CC, b+R_B, b+R_T))
    both(lambda b: g(f"v_pk_mul_f32 {vp(b+R_C)}, {vp(b+R_C)}, {vp(V_DT+2)} neg_hi:[1,0]"))
    def direct(dst_off, scale):
        if scale is None:
            both(lambda b: g(f"v_exp_f32 v{b+R_M}, v{b+R_AL}"))
            both(lambda b: g(f"v_fract_f32 v{b+R_T+1}, v{b+R_AL+1}"))
        else:
            both(lambda b: g(f"v_pk_mul_f32 {vp(b+R_T)}, {vp(b+R_AL)}, s[{scale}:{scale+1}]"))
            both(lambda b: g(f"v_exp_f32 v{b+R_M}, v{b+R_T}"))
            both(lambda b: g(f"v_fract_f32 v{b+R_T+1}, v{b+R_T+1}"))
        both(lambda b: g(f"v_cos_f32 v{b+dst_off}, v{b+R_T+1}"))
        both(lambda b: g(f"v_sin_f32 v{b+dst_off+1}, v{b+R_T+1}"))
        g("s_nop 0")
        both(lambda b: g(f"v_pk_mul_f32 {vp(b+dst_off)}, {vp(b+dst_off)}, {vp(b+R_M)} op_sel_hi:[1,0]"))
    direct(R_Z8, S_C8)
    direct(R_Z1, None)
    direct(R_Z256, S_C256)
    wcount = [0]
    def twrite(src_off, positions):
        p = V_DW + 2 * (wcount[0] % 4); wcount[0] += 1
        for M in (0, 1):
            b = MB(M)
            g(f"v_cvt_pk_bf16_f32 v{p+M}, v{b+src_off}, v{b+src_off+1}")
        for pos in positions:
            if 'nowr' not in OPT: g(f"ds_write_b64 v{V_TW}, {vp(p)} offset:{pos*RS}")
    g(f"v_mov_b32 v{V_DW}, 0x00003f80\nv_mov_b32 v{V_DW+1}, 0x00003f80")
    g(f"ds_write_b64 v{V_TW}, {vp(V_DW)} offset:{NA*RS}")
    wcount[0] = 1
    twrite(R_Z8, [NA+1])
    both(lambda b: cmul(b+R_Y, b+R_Z8, b+R_Z8, b+R_T))
    twrite(R_Y, [NA+2])
    for j in range(3, 32):
        both(lambda b: cmul(b+R_Y, b+R_Y, b+R_Z8, b+R_T))
        twrite(R_Y, [NA+j])
        if j == 12 and 'noul' not in OPT: uload(2)
    rowpos = {0:[0],1:[1],2:[2],3:[3],256:[4,5],258:[6],260:[7,12,13],4:[8],5:[9],6:[10],7:[11],262:[14],264:[15],
              512:[16],516:[17],1024:[18],1536:[19],768:[20],772:[21],1280:[22],1792:[23],2048:[24]}
    both(lambda b: cmul(b+R_Z2, b+R_Z1, b+R_Z1, b+R_T))
    both(lambda b: cmul(b+R_Z4, b+R_Z2, b+R_Z2, b+R_T))
    twrite(R_C, rowpos[0])
    prev = R_C
    for r in range(1, 8):
        dst = {2:R_X2, 4:R_X4, 6:R_X6}.get(r, R_X)
        both(lambda b: cmul(b+dst, b+prev, b+R_Z1, b+R_T, conj=True))
        twrite(dst, rowpos[r])
        prev = dst
    if 'noul' not in OPT: uload(3)
    both(lambda b: cmul(b+R_E, b+R_C, b+R_Z256, b+R_T, conj=True))
    twrite(R_E, rowpos[256])
    for src, r in ((R_X2, 258), (R_X4, 260), (R_X6, 262)):
        both(lambda b: cmul(b+R_X, b+src, b+R_Z256, b+R_T, conj=True))
        twrite(R_X, rowpos[r])
    both(lambda b: cmul(b+R_X, b+R_E, b+R_Z8, b+R_T, conj=True))
    twrite(R_X, rowpos[264])
    for k in range(2, 9):
        both(lambda b: cmul(b+R_E, b+R_E, b+R_Z256, b+R_T, conj=True))
        twrite(R_E, rowpos[256*k])
        if k in (2, 3):
            both(lambda b: cmul(b+R_X, b+R_E, b+R_Z4, b+R_T, conj=True))
            twrite(R_X, rowpos[256*k+4])
    stamp()
    if 'noul' in OPT:
        uload(2); uload(3)
    for r in range(16):
        g(f"v_mov_b32 v{V_KD+r}, 0")
    g("s_waitcnt lgkmcnt(0)")
    def rd(kb):
        g(f"ds_read_b128 {aq(4*kb)}, v{V_AR} offset:{32*kb}")
        g(f"ds_read_b128 {aq(64+4*kb)}, v{V_BR} offset:{32*kb}")
    PF = 6
    for kb in range(PF): rd(kb)
    issued = PF
    for kb in range(16):
        outstanding_after = 2 * (issued - kb - 1)
        g(f"s_waitcnt lgkmcnt({outstanding_after})")
        g(f"v_mfma_f32_32x32x16_bf16 v[{V_KD}:{V_KD+15}], {aq(4*kb)}, {aq(64+4*kb)}, v[{V_KD}:{V_KD+15}]")
        if issued < 16:
            rd(issued); issued += 1
    def stage(t):
        b = V_UST + 4*t
        g(f"v_perm_b32 v{V_T0}, v{b+2}, v{b}, s{S_PLO}")
        g(f"v_perm_b32 v{V_T1}, v{b+2}, v{b}, s{S_PHI}")
        g(f"v_perm_b32 v{V_T2}, v{b+3}, v{b+1}, s{S_PLO}")
        g(f"v_perm_b32 v{V_XO}, v{b+3}, v{b+1}, s{S_PHI}")
        for c, r in enumerate((V_T0, V_T1, V_T2, V_XO)):
            g(f"ds_write_b32 v{V_US}, v{r} offset:{UCH*c + 256*t}")
    stamp()
    g("s_waitcnt vmcnt(4)")
    stage(0); stage(1)
    g("s_nop 7")
    D = V_KD
    S0, S1, S2, S8, S10, S11, T10, T11 = V_S, V_S+1, V_S+2, V_S+3, V_S+4, V_S+5, V_S+6, V_S+7
    def shift(dst, cur, nxt):
        g(f"v_mov_b32_dpp v{dst}, v{nxt} wave_rol:1 row_mask:0xf bank_mask:0xf")
        g(f"v_mov_b32_dpp v{dst}, v{cur} wave_shl:1 row_mask:0xf bank_mask:0xf")
    shift(S0, D+0, D+8); shift(S1, D+1, D+8); shift(S2, D+2, D+8)
    shift(S8, D+8, D+10); shift(S10, D+10, D+11); shift(S11, D+11, D+12)
    g(f"v_cndmask_b32 v{T10}, v{D+10}, v{S10}, s[{S_ODD}:{S_ODD+1}]")
    g(f"v_cndmask_b32 v{T11}, v{D+11}, v{S11}, s[{S_ODD}:{S_ODD+1}]")
    def val(p, beta):
        if p == 0: return D+beta if beta <= 7 else [S0, S1, S2][beta-8]
        if p == 1: return D+8 if beta <= 2 else (D+9 if beta <= 5 else S8)
        v, S, T = (D+10, S10, T10) if p == 2 else (D+11, S11, T11)
        return v if beta <= 3 else (T if beta == 4 else S)
    def epi(m):
        n = 0
        for e in (0, 1):
            rho = 2*m + e
            for p in range(4):
                c = V_CH + 4 * (n % 4); n += 1
                for d in range(4):
                    g(f"v_cvt_pk_bf16_f32 v{c+d}, v{val(p, rho+7-2*d)}, v{val(p, rho+6-2*d)}")
                g(f"ds_write_b128 v{V_KW}, {vq(c)} offset:{e*CP1 + 1024*(3-p)}")
        g(f"s_mul_i32 s{S_T0}, s{S_W}, {WR}")
        g(f"v_lshlrev_b32 v{V_T0}, 4, v{V_LANE}")
        g(f"v_add_u32 v{V_T0}, s{S_T0}, v{V_T0}")
        g(f"s_mov_b64 exec, 15")
        for r in range(4): g(f"v_mov_b32 v{V_CH+r}, 0")
        g(f"ds_write_b128 v{V_T0}, {vq(V_CH)} offset:4096")
        g(f"ds_write_b128 v{V_T0}, {vq(V_CH)} offset:{CP1+4096}")
        g(f"s_mov_b64 exec, 1")
        for e in (0, 1):
            rho = 2*m + e
            if rho == 0: continue
            def kv(i): return f"v{D+i}" if i >= 0 else "0"
            g(f"v_cvt_pk_bf16_f32 v{V_CH+4}, {kv(rho-1)}, {kv(rho-2)}")
            g(f"v_cvt_pk_bf16_f32 v{V_CH+5}, {kv(rho-3)}, {kv(rho-4)}")
            g(f"ds_write_b64 v{V_T0}, {vp(V_CH+4)} offset:{e*CP1+4096}")
        g(f"s_mov_b64 exec, -1")
    g(f"s_cmp_eq_u32 s{S_M}, 0\ns_cbranch_scc0 L_epi1")
    epi(0)
    g("s_branch L_epi_done\nL_epi1:")
    epi(1)
    g("L_epi_done:")
    if debug:
        g("s_waitcnt lgkmcnt(0)")
        g(f"s_lshl_b32 s{S_T0}, s2, 2\ns_add_u32 s{S_T0}, s{S_T0}, s{S_W}\ns_lshl_b32 s{S_T0}, s{S_T0}, 14")
        g(f"s_add_u32 s74, s72, s{S_T0}\ns_addc_u32 s75, s73, 0")
        g(f"s_mul_i32 s{S_T1}, s{S_W}, {WR}")
        g(f"v_lshlrev_b32 v{V_T0}, 4, v{V_LANE}\nv_add_u32 v{V_T1}, s{S_T1}, v{V_T0}")
        for i in range(9):
            g(f"ds_read_b128 {vq(V_CH)}, v{V_T1} offset:{1024*i}\ns_waitcnt lgkmcnt(0)")
            g(f"global_store_dwordx4 v{V_T0}, {vq(V_CH)}, s[74:75] offset:{0}")
            g(f"v_add_u32 v{V_T0}, 1024, v{V_T0}\ns_waitcnt vmcnt(0)")
    g("s_waitcnt lgkmcnt(0)\ns_barrier")
    stamp()
    jobs = []
    for W in range(-15, 49):
        ts = [t for t in range(4) if 16*t - W >= 0]
        for t in ts:
            jobs.append(("m", t, 16*t - W, W))
        if W % 16 == 0 and W >= 0:
            jobs.append(("d", W//16, None, W))
            jobs.append(("ev", W//16, None, W))
    loaded_k = set(); loaded_w = set()
    reads = []
    for ji, j in enumerate(jobs):
        if j[0] in ("m", "d"):
            W = j[3]
            if W not in loaded_w:
                loaded_w.add(W)
                reads.append((ji, "w", W))
            if j[0] == "m" and j[2] not in loaded_k:
                loaded_k.add(j[2]); reads.append((ji, "k", j[2]))
    def win_reg(W): return V_WIN + 4 * ((W + 15) % 4)
    last_use_w = {}
    for ji, j in enumerate(jobs):
        if j[0] in ("m", "d"): last_use_w[j[3]] = ji
    ev_job = {j[1]: ji for ji, j in enumerate(jobs) if j[0] == "ev"}
    def window_ok(W, ji):
        if W - 4 >= -15 and last_use_w[W-4] >= ji: return False
        tile = 0 if W <= 0 else (W + 15) // 16
        if tile >= 2 and ji <= ev_job[tile-2]: return False
        return True
    q = []
    rp = 0
    done_tag = {}
    def n_instr(r): return 1 if r[1] == "w" else 2
    def issue(r):
        if r[1] == "w":
            W = r[2]
            g(f"ds_read_b128 {vq(win_reg(W))}, v{V_UR} offset:{16*(W+15)}")
            q.append(("w", W))
        else:
            s_ = r[2]
            g(f"ds_read_b64 a[{4*s_}:{4*s_+1}], v{V_KR} offset:{64*(63-s_)}")
            g(f"ds_read_b64 a[{4*s_+2}:{4*s_+3}], v{V_KR} offset:{64*(63-s_)+8}")
            q.append(("k", s_)); q.append(("k", s_))
    waited = 0
    def need(tags):
        nonlocal waited
        last = -1
        for i, tg in enumerate(q):
            if tg in tags: last = i
        if last >= waited:
            g(f"s_waitcnt lgkmcnt({len(q) - 1 - last})")
            waited = last + 1
    LOOK = 8
    for ji, j in enumerate(jobs):
        while rp < len(reads) and reads[rp][0] <= ji + LOOK and (len(q) - waited) + n_instr(reads[rp]) <= 14:
            r = reads[rp]
            if r[1] == "w" and not window_ok(r[2], ji): break
            issue(r); rp += 1
        if j[0] == "m":
            t, sig, W = j[1], j[2], j[3]
            assert ("w", W) in q and ("k", sig) in q, (j,)
            need({("w", W), ("k", sig)})
            acc = vq(V_ACC + 4*t)
            g(f"v_mfma_f32_16x16x32_bf16 {acc}, {aq(4*sig)}, {vq(win_reg(W))}, {acc}")
        elif j[0] == "d":
            t, W = j[1], j[3]
            need({("w", W)})
            acc = vq(V_ACC + 4*t)
            g(f"v_mfma_f32_16x16x32_bf16 {acc}, {vq(V_DF)}, {vq(win_reg(W))}, {acc}")
        else:
            t = j[1]
            a = V_ACC + 4*t
            if t + 2 <= 3:
                g(f"s_waitcnt vmcnt({2 if t == 0 else 0 + 1})")
                stage(t + 2)
            g("s_nop 7")
            g(f"v_cvt_pk_bf16_f32 v{V_XO}, v{a}, v{a+1}")
            g(f"v_cvt_pk_bf16_f32 v{V_XO+1}, v{a+2}, v{a+3}")
            xb = 2048 * (t & 1)
            g(f"ds_write_b16 v{V_XW}, v{V_XO} offset:{xb}")
            g(f"ds_write_b16_d16_hi v{V_XW}, v{V_XO} offset:{xb+512}")
            g(f"ds_write_b16 v{V_XW}, v{V_XO+1} offset:{xb+1024}")
            g(f"ds_write_b16_d16_hi v{V_XW}, v{V_XO+1} offset:{xb+1536}")
            g("s_waitcnt lgkmcnt(0)\ns_barrier")
            g(f"ds_read_b64 {vp(V_XO+2)}, v{V_XR} offset:{xb}")
            g("s_waitcnt lgkmcnt(0)")
            waited = len(q)
            g(f"global_store_dwordx2 v{V_OG}, {vp(V_XO+2)}, s[{S_OT+2*t}:{S_OT+2*t+1}]")
            stamp()
    assert rp == len(reads)
    if stamps:
        g("s_waitcnt vmcnt(0)")
        stamp()
        g("s_memrealtime s[74:75]")
        g("s_waitcnt lgkmcnt(0)")
        g("s_load_dwordx2 s[10:11], s[0:1], 80")
        g("s_load_dwordx2 s[12:13], s[0:1], 88")
        g("s_waitcnt lgkmcnt(0)")
        g(f"s_lshl_b32 s14, s2, 2\ns_add_u32 s14, s14, s{S_W}\ns_lshl_b32 s14, s14, 7")
        g("s_add_u32 s12, s12, s14\ns_addc_u32 s13, s13, 0")
        g("s_mov_b64 exec, 1")
        g("v_mov_b32 v13, 0")
        for i in range(nst[0]):
            if i == 0:
                g("v_mov_b32 v14, s76")
            else:
                g(f"s_sub_u32 s15, s{76+2*i}, s76\nv_mov_b32 v14, s15")
            g(f"global_store_dword v13, v14, s[12:13] offset:{4*i}")
            g(f"s_cmp_eq_u32 s14, 0\ns_cbranch_scc0 L_nd{i}\nglobal_store_dword v13, v14, s[10:11] offset:{4*i}\nL_nd{i}:")
        g(f"s_sub_u32 s15, s{76+2*(nst[0]-1)}, s76\nv_mov_b32 v14, s15\nglobal_atomic_umax v13, v14, s[10:11] offset:48")
        g("s_sub_u32 s15, s80, s76\nv_mov_b32 v14, s15\nglobal_atomic_umax v13, v14, s[10:11] offset:52")
        g("v_mov_b32 v14, s74\nglobal_atomic_umax v13, v14, s[10:11] offset:56")
        g("s_not_b32 s15, s72\nv_mov_b32 v14, s15\nglobal_atomic_umax v13, v14, s[10:11] offset:60")
        g("v_mov_b32 v14, s72\nglobal_store_dword v13, v14, s[12:13] offset:120")
        g("v_mov_b32 v14, s74\nglobal_store_dword v13, v14, s[12:13] offset:124")
        g("s_waitcnt vmcnt(0)")
    g("L_end:\ns_endpgm")
    return g

HEADER = """; Kernarg layout (96 bytes): u, A_re, A_im, B_re, B_im, C_re, C_im, log_dt, Dskip, out, debug, ws (8 bytes each)
; @launch grid=(256,1,1) block=(256,1,1) lds=%d
.amdgcn_target "amdgcn-amd-amdhsa--gfx950"
.text
.globl standalone__ssm_conv_s4__prompt_kernel
.p2align 8
.type standalone__ssm_conv_s4__prompt_kernel,@function
standalone__ssm_conv_s4__prompt_kernel:
""" % LDS_TOTAL
FOOTER = """.section .rodata,"a"
.p2align 6
.amdhsa_kernel standalone__ssm_conv_s4__prompt_kernel
  .amdhsa_next_free_vgpr 512
  .amdhsa_next_free_sgpr 102
  .amdhsa_accum_offset 256
  .amdhsa_group_segment_fixed_size 0
  .amdhsa_kernarg_size 96
  .amdhsa_user_sgpr_count 2
  .amdhsa_user_sgpr_kernarg_segment_ptr 1
  .amdhsa_system_sgpr_workgroup_id_x 1
.end_amdhsa_kernel
"""
if __name__ == "__main__":
    out = sys.argv[1]
    dbg = len(sys.argv) > 2 and sys.argv[2] == "debug"
    st = len(sys.argv) > 2 and sys.argv[2] == "stamps"
    g = gen(dbg, st)
    open(out, "w").write(HEADER + g.text() + FOOTER)
    print("LDS", LDS_TOTAL, "lines", len(g.L))
```

```python
import sys, os
OPT = os.environ.get('OPT', '').split(',')
def env(n, d): return int(os.environ.get(n, d))

class G:
    def __init__(self): self.L = []
    def __call__(self, s):
        for ln in s.strip("\n").split("\n"):
            ln = ln.strip()
            if ln: self.L.append(ln)
    def text(self):
        out = []
        for l in self.L:
            out.append(l if (l.endswith(":") or l.startswith(".") or l.startswith(";")) else "    " + l)
        return "\n".join(out) + "\n"

def vp(i): return f"v[{i}:{i+1}]"
def vq(i): return f"v[{i}:{i+3}]"
def aq(i): return f"a[{i}:{i+3}]"
def sp(i): return f"s[{i}:{i+1}]"

RS = 528; NA = 25; WR = 30208
UB = 4 * WR; UCH = 5120; UH = 1280
XB = UB + 4 * UCH
LDS_TOTAL = XB + 16384
CP1 = 4224

S_W, S_XCD, S_IDX, S_M, S_D0, S_D, S_C, S_R = 3, 4, 5, 6, 7, 8, 9, 10
P_U, P_ARE, P_AIM, P_BRE, P_BIM, P_CRE, P_CIM, P_LDT = 16, 18, 20, 22, 24, 26, 28, 30
P_DSK, P_OUT = 32, 34
S_LDT, S_DSK = 36, 38
S_C256, S_LC = 42, 44
S_PLO, S_PHI = 46, 47
S_ODD = 48
S_UT = 50
S_OT = 58
S_T0, S_T1, S_T2, S_T3 = 66, 67, 68, 69
S_WB = 70
S_D02 = 71

V_LANE = 1
V_TW, V_AR, V_BR, V_KW, V_KR, V_UR, V_US, V_UG, V_XW, V_XR, V_OG = 2, 3, 4, 5, 6, 7, 8, 9, 10, 11, 12
V_T0, V_T1, V_T2 = 13, 14, 15
V_UST = 16
V_DF = 24
V_DT = 28
V_ACC = 32
V_MB = 48
MSZ = 30
def MB(M): return V_MB + MSZ * M
R_AL, R_C, R_Z1, R_Z2, R_Z4, R_Z256, R_T, R_X, R_E, R_X2, R_X4, R_X6, R_B, R_CC, R_M = [2*i for i in range(15)]
R_Z8, R_Y = R_Z1, R_X
V_DW = 112
V_KD = 112
V_AOP = 48
V_S = 80
V_CH = 88
V_RK = 88
V_RW = 48
V_XO = 104
V_PT = 120
V_PO = 124
V_SP = 24
V_PAR = 106

def gen(stamps=False):
    g = G()
    def stamp_at(i):
        if stamps: g(f"s_memtime s[{76+2*i}:{77+2*i}]")
    def common_early():
        g(f"""
v_lshrrev_b32 v{V_UG}, 2, v{V_LANE}
v_lshlrev_b32 v{V_UG}, 5, v{V_UG}
v_and_b32 v{V_T2}, 3, v{V_LANE}
v_lshl_add_u32 v{V_UG}, v{V_T2}, 1, v{V_UG}
s_lshl_b32 s{S_T0}, s{S_C}, 3
v_add_u32 v{V_UG}, s{S_T0}, v{V_UG}
v_lshlrev_b32 v{V_UG}, 10, v{V_UG}
v_add_u32 v{V_UG}, s{S_D02}, v{V_UG}
v_lshlrev_b32 v{V_TW}, 3, v{V_LANE}
v_add_u32 v{V_TW}, s{S_WB}, v{V_TW}
s_mov_b32 s{S_LC}, 0x3fb8aa3b
s_mov_b32 s{S_LC+1}, 0x3e22f983
""")
    def unpack(dst, src, M):
        if M == 0: g(f"v_lshlrev_b32 v{dst}, 16, v{src}")
        else: g(f"v_and_b32 v{dst}, 0xffff0000, v{src}")

    def uload(base, slot):
        g(f"global_load_dwordx2 {vp(V_UST+4*slot)}, v{V_UG}, {sp(base)}")
        g(f"global_load_dwordx2 {vp(V_UST+4*slot+2)}, v{V_UG}, {sp(base)} offset:1024")
    def uload_to(base, reg):
        g(f"global_load_dwordx2 {vp(reg)}, v{V_UG}, {sp(base)}")
        g(f"global_load_dwordx2 {vp(reg+2)}, v{V_UG}, {sp(base)} offset:1024")
    def stage_txt(t, slot, tmp4):
        b = V_UST + 4*slot if slot < 8 else slot
        L = [f"v_perm_b32 v{V_T0}, v{b+2}, v{b}, s{S_PLO}",
             f"v_perm_b32 v{V_T1}, v{b+2}, v{b}, s{S_PHI}",
             f"v_perm_b32 v{V_T2}, v{b+3}, v{b+1}, s{S_PLO}",
             f"v_perm_b32 v{tmp4}, v{b+3}, v{b+1}, s{S_PHI}"]
        W = [f"ds_write_b32 v{V_US}, v{r} offset:{UCH*c + 256*t}" for c, r in enumerate((V_T0, V_T1, V_T2, tmp4))]
        return L, W
    def stage(t, slot, tmp4):
        L, W = stage_txt(t, slot, tmp4)
        for x in L + W: g(x)
    def us_addr():
        g(f"""
s_mul_i32 s{S_T0}, s{S_C}, {UH}
s_add_u32 s{S_T0}, s{S_T0}, {UB + 240}
v_lshlrev_b32 v{V_US}, 2, v{V_LANE}
v_add_u32 v{V_US}, s{S_T0}, v{V_US}
s_mov_b32 s{S_PLO}, 0x05040100
s_mov_b32 s{S_PHI}, 0x07060302
""")
    def dt_code(scale8):
        g(f"""
s_waitcnt lgkmcnt(0)
s_lshl_b32 s{S_T0}, s{S_C}, 4
s_lshr_b64 {sp(S_LDT)}, {sp(S_LDT)}, s{S_T0}
s_lshl_b32 s{S_LDT}, s{S_LDT}, 16
v_mov_b32 v{V_T0}, s{S_LC}
v_mul_f32 v{V_T1}, s{S_LDT}, v{V_T0}
v_fma_f32 v{V_T2}, s{S_LDT}, v{V_T0}, -v{V_T1}
v_mov_b32 v{V_T0}, 0x32a57060
v_fma_f32 v{V_T2}, s{S_LDT}, v{V_T0}, v{V_T2}
v_exp_f32 v{V_T1}, v{V_T1}
v_mul_f32 v{V_T2}, 0x3f317218, v{V_T2}
v_fma_f32 v{V_T1}, v{V_T1}, v{V_T2}, v{V_T1}
v_cvt_pk_bf16_f32 v{V_T1}, v{V_T1}, v{V_T1}
v_lshlrev_b32 v{V_DT+2}, 16, v{V_T1}
""")
        if scale8:
            g(f"v_mul_f32 v{V_DT+2}, 0x41000000, v{V_DT+2}")
        g(f"v_mov_b32 v{V_DT+3}, v{V_DT+2}")
        g(f"v_pk_mul_f32 {vp(V_DT)}, {vp(V_DT+2)}, {sp(S_LC)}")
    def cmul(dst, a, bb, tmp, conj=False):
        g(f"v_pk_mul_f32 {vp(tmp)}, {vp(a)}, {vp(bb)} op_sel_hi:[1,0]")
        neg = "neg_hi:[0,1,0]" if conj else "neg_lo:[0,1,0]"
        g(f"v_pk_fma_f32 {vp(dst)}, {vp(a)}, {vp(bb)}, {vp(tmp)} op_sel:[1,1,0] op_sel_hi:[0,1,1] {neg}")
    def both(f):
        for M in (0, 1): f(MB(M))
    def direct(dst, arg):
        both(lambda b: g(f"v_exp_f32 v{b+R_M}, v{b+arg}"))
        both(lambda b: g(f"v_fract_f32 v{b+R_M+1}, v{b+arg+1}"))
        both(lambda b: g(f"v_cos_f32 v{b+dst}, v{b+R_M+1}"))
        both(lambda b: g(f"v_sin_f32 v{b+dst+1}, v{b+R_M+1}"))
        g("s_nop 0")
        both(lambda b: g(f"v_pk_mul_f32 {vp(b+dst)}, {vp(b+dst)}, {vp(b+R_M)} op_sel_hi:[1,0]"))
    wcount = [0]
    def twrite(src_off, positions):
        p = V_DW + 2 * (wcount[0] % 4); wcount[0] += 1
        for M in (0, 1):
            b = MB(M)
            g(f"v_cvt_pk_bf16_f32 v{p+M}, v{b+src_off}, v{b+src_off+1}")
        for pos in positions:
            g(f"ds_write_b64 v{V_TW}, {vp(p)} offset:{pos*RS}")
    def kr_lines():
        return f"""
v_and_b32 v{V_T0}, 1, v{V_LANE}
v_bfe_u32 v{V_T1}, v{V_LANE}, 1, 3
s_xor_b32 s{S_T0}, s{S_M}, 1
v_xor_b32 v{V_T2}, 1, v{V_T0}
v_and_b32 v{V_T2}, s{S_T0}, v{V_T2}
v_add_u32 v{V_T2}, v{V_T1}, v{V_T2}
v_lshlrev_b32 v{V_T2}, 3, v{V_T2}
v_mul_u32_u24 v{V_KR}, {CP1}, v{V_T0}
v_sub_u32 v{V_KR}, v{V_KR}, v{V_T2}
v_lshrrev_b32 v{V_T2}, 4, v{V_LANE}
v_lshlrev_b32 v{V_T2}, 4, v{V_T2}
v_add_u32 v{V_KR}, v{V_KR}, v{V_T2}
s_add_u32 s{S_T0}, s{S_WB}, 64
v_add_u32 v{V_KR}, s{S_T0}, v{V_KR}
""".strip().split("\n")
    def ur_lines():
        return f"""
v_lshrrev_b32 v{V_T1}, 4, v{V_LANE}
v_mul_u32_u24 v{V_T1}, {UH}, v{V_T1}
v_and_b32 v{V_T0}, 15, v{V_LANE}
v_lshlrev_b32 v{V_T2}, 4, v{V_T0}
v_add_u32 v{V_UR}, v{V_T1}, v{V_T2}
s_mul_i32 s{S_T0}, s{S_C}, {UCH}
s_add_u32 s{S_T0}, s{S_T0}, {UB}
v_add_u32 v{V_UR}, s{S_T0}, v{V_UR}
""".strip().split("\n")
    def x_lines(role):
        return f"""
v_lshlrev_b32 v{V_T1}, 4, v{V_LANE}
s_lshl_b32 s{S_T0}, s{S_C}, 11
s_add_u32 s{S_T0}, s{S_T0}, {XB + 1024*role}
v_add_u32 v{V_XW}, s{S_T0}, v{V_T1}
v_and_b32 v{V_T0}, 7, v{V_LANE}
v_lshrrev_b32 v{V_T1}, 5, v{V_LANE}
v_lshl_add_u32 v{V_T0}, v{V_T1}, 3, v{V_T0}
v_bfe_u32 v{V_T1}, v{V_LANE}, 3, 2
v_lshlrev_b32 v{V_XR}, 4, v{V_T0}
v_lshl_add_u32 v{V_XR}, v{V_T1}, 2, v{V_XR}
s_lshl_b32 s{S_T0}, s{S_C}, 8
s_add_u32 s{S_T0}, s{S_T0}, {XB}
v_add_u32 v{V_XR}, s{S_T0}, v{V_XR}
v_lshlrev_b32 v{V_OG}, 5, v{V_T0}
v_lshrrev_b32 v{V_T2}, 1, v{V_T1}
v_lshl_add_u32 v{V_OG}, v{V_T2}, 2, v{V_OG}
v_and_b32 v{V_T1}, 1, v{V_T1}
v_xor_b32 v{V_T2}, 1, v{V_T1}
v_mul_u32_u24 v{V_T2}, 3, v{V_T2}
v_add_u32 v{V_T1}, 1, v{V_T1}
s_cmp_eq_u32 s{S_M}, 0
s_cselect_b64 vcc, -1, 0
v_cndmask_b32 v{V_T1}, v{V_T1}, v{V_T2}, vcc
v_add_u32 v{V_OG}, v{V_OG}, v{V_T1}
s_lshl_b32 s{S_T0}, s{S_C}, 3
v_add_u32 v{V_OG}, s{S_T0}, v{V_OG}
v_lshlrev_b32 v{V_OG}, 10, v{V_OG}
v_add_u32 v{V_OG}, s{S_D02}, v{V_OG}
""".strip().split("\n")
    def ot_lines(tiles):
        L = []
        for i, t in enumerate(tiles):
            L += [f"s_add_u32 s{S_OT+2*i}, s{P_OUT}, {t*0x80000}", f"s_addc_u32 s{S_OT+2*i+1}, s{P_OUT+1}, 0"]
        return L

    if stamps: g("s_memrealtime s[72:73]")
    stamp_at(0)
    g(f"""
s_cmp_ge_u32 s2, 256
s_cbranch_scc1 L_end
s_load_dwordx16 s[16:31], s[0:1], 0
s_load_dwordx4 s[32:35], s[0:1], 64
v_lshrrev_b32 v{V_T0}, 6, v0
v_and_b32 v{V_LANE}, 63, v0
v_readfirstlane_b32 s{S_W}, v{V_T0}
s_and_b32 s{S_XCD}, s2, 7
s_lshr_b32 s{S_IDX}, s2, 3
s_and_b32 s{S_M}, s{S_IDX}, 1
s_lshr_b32 s{S_T0}, s{S_IDX}, 1
s_lshl_b32 s{S_T0}, s{S_T0}, 2
s_lshl_b32 s{S_D0}, s{S_XCD}, 6
s_add_u32 s{S_D0}, s{S_D0}, s{S_T0}
s_and_b32 s{S_C}, s{S_W}, 3
s_lshr_b32 s{S_R}, s{S_W}, 2
s_add_u32 s{S_D}, s{S_D0}, s{S_C}
s_lshl_b32 s{S_D02}, s{S_D0}, 1
s_mul_i32 s{S_WB}, s{S_C}, {WR}
s_lshl_b32 s{S_T0}, s{S_D}, 8
v_lshlrev_b32 v{V_PO}, 2, v{V_LANE}
v_add_u32 v{V_PO}, s{S_T0}, v{V_PO}
v_mov_b32 v{V_UG}, 0
v_mov_b32 v{V_OG}, 0
s_cmp_eq_u32 s{S_R}, 0
s_cbranch_scc0 L_Bearly
s_mov_b64 exec, 0
s_cmp_eq_u32 s{S_W}, 0
s_cbranch_scc1 L_pg1
s_cmp_eq_u32 s{S_W}, 1
s_cbranch_scc1 L_pg2
s_cmp_eq_u32 s{S_W}, 2
s_cbranch_scc1 L_pgB
s_branch L_back
L_Bearly:
""")
    common_early(); us_addr()
    for x in kr_lines() + ur_lines() + x_lines(1): g(x)
    g(f"""
L_back:
s_mov_b64 exec, -1
s_cmp_eq_u32 s{S_R}, 0
s_waitcnt lgkmcnt(0)
""")
    stamp_at(1)
    g(f"global_load_dword v{V_PAR}, v{V_PO}, {sp(P_ARE)}")
    g(f"global_load_dword v{V_PAR+1}, v{V_PO}, {sp(P_AIM)}")
    g("s_cbranch_scc1 L_skipB")
    for i, p in enumerate([P_BRE, P_BIM, P_CRE, P_CIM]):
        g(f"global_load_dword v{V_PAR+2+i}, v{V_PO}, {sp(p)}")
    g(f"s_add_u32 s{P_DSK}, s{P_DSK}, s{S_D02}\ns_addc_u32 s{P_DSK+1}, s{P_DSK+1}, 0")
    g(f"s_load_dwordx2 {sp(S_DSK)}, {sp(P_DSK)}, 0")
    g("s_branch L_par_done")
    g("L_skipB:")
    g(f"v_mov_b32 v{V_T0}, 0")
    g(f"global_load_dword v{V_PAR+2}, v{V_T0}, {sp(P_U)}")
    g(f"global_load_dword v{V_PAR+3}, v{V_T0}, {sp(P_OUT)}")
    g("L_par_done:")
    g(f"s_add_u32 s{P_LDT}, s{P_LDT}, s{S_D02}\ns_addc_u32 s{P_LDT+1}, s{P_LDT+1}, 0")
    g(f"s_load_dwordx2 {sp(S_LDT)}, {sp(P_LDT)}, 0")
    g(f"s_cmp_eq_u32 s{S_R}, 0")
    g("s_barrier")
    g(f"s_cbranch_scc0 L_roleB")

    def win_areg(W, p): return 64 + 4 * ((W + 15 - (1 - p)) // 2)
    def conv(p, role, extra):
        jobs = []
        def m(t, sig): jobs.append(("m", t, sig, 16*t - sig))
        par = lambda lo, hi: [x for x in range(lo, hi) if x % 2 == p]
        groups = []
        def grp(*js): groups.append(list(js))
        M_ = lambda t, sig: ("m", t, sig, 16*t - sig)
        D_ = lambda t: ("d", t, None, 16*t)
        for s_ in par(0, 16):
            gg = [M_(0, s_), M_(1, s_)]
            if p == 0 and s_ == 0: gg.append(D_(0))
            grp(*gg)
        groups.append(("done", 0))
        for s_ in par(16, 32):
            gg = [M_(1, s_), M_(2, s_)]
            if p == 0 and s_ == 16: gg.append(D_(1))
            grp(*gg)
        groups.append(("done", 1))
        for s_ in par(32, 48): grp(M_(2, s_), M_(3, s_))
        for W in par(17, 33):
            gg = [M_(2, 32 - W), M_(3, 48 - W)]
            if p == 0 and W == 32: gg.append(D_(2))
            grp(*gg)
        groups.append(("done", 2))
        a = par(48, 64); b = par(33, 49)
        for i in range(4): grp(M_(3, a[2*i]), M_(3, a[2*i+1]))
        for i in range(4):
            gg = [M_(3, 48 - b[2*i]), M_(3, 48 - b[2*i+1])]
            if p == 0 and b[2*i+1] == 48: gg.append(D_(3))
            grp(*gg)
        groups.append(("done", 3))
        DA, DB, DS = env('DA', 1), env('DB', 3), env('DS', 6)
        items = []; delayed = []
        for j in groups:
            if isinstance(j, tuple) and j[0] == "done":
                t = j[1]
                delayed += [[DA, ("add", t)], [DB, ("bar", t)], [DS, ("st", t)]]
                continue
            items.append(j)
            for d in delayed: d[0] -= 1
            while delayed and delayed[0][0] <= 0: items.append(delayed.pop(0)[1])
        for d in delayed: items.append(d[1])
        def kreg(sig):
            if sig < 32: return aq(4 * (sig // 2))
            return vq(V_RK + 4 * (((sig - 32) // 2) % 4))
        def kreg_lo(sig):
            if sig < 32: return f"a[{4*(sig//2)}:{4*(sig//2)+1}]", f"a[{4*(sig//2)+2}:{4*(sig//2)+3}]"
            b_ = V_RK + 4 * (((sig - 32) // 2) % 4)
            return vp(b_), vp(b_ + 2)
        def wreg(W):
            if W <= 16: return aq(win_areg(W, p))
            return vq(V_RW + 4 * (((W - 17) // 2) % 4))
        reads = []; seenk = set(); seenw = set(); lastuse = {}
        for ji, it in enumerate(items):
            if isinstance(it, list):
                for j in it:
                    W = j[3]
                    if W > 16 and W not in seenw:
                        seenw.add(W); reads.append((ji, "w", W))
                    if j[0] == "m" and j[2] not in seenk:
                        seenk.add(j[2]); reads.append((ji, "k", j[2], 0)); reads.append((ji, "k", j[2], 1))
                    lastuse[("w", W)] = ji
                    if j[0] == "m": lastuse[("k", j[2])] = ji
        barj = {it[1]: ji for ji, it in enumerate(items) if isinstance(it, tuple) and it[0] == "bar"}
        def ok(r, ji):
            kind, x = r[1], r[2]
            if kind == "k" and x >= 40 and lastuse[("k", x - 8)] >= ji: return False
            if kind == "w":
                if x - 8 >= 17 and lastuse[("w", x - 8)] >= ji: return False
                if x >= 33 and ji <= barj[0]: return False
            return True
        q = []; st = {"waited": 0, "rp": 0}
        def room(n):
            out = len(q) - st["waited"]
            if out + n > 15:
                keep = 15 - n
                g(f"s_waitcnt lgkmcnt({keep})"); st["waited"] = len(q) - keep
        def issue(r):
            if 'nord' in OPT:
                q.append(("w", r[2]) if r[1] == "w" else ("k", r[2])); return
            if 'halfk' in OPT and r[1] == "k" and r[3] == 1:
                q.append(("k", r[2])); g("s_nop 0") if 'nopfill' in OPT else None; return
            if 'nok' in OPT and r[1] == "k":
                q.append(("k", r[2])); return
            if r[1] == "w":
                W = r[2]
                g(f"ds_read_b128 {wreg(W)}, v{V_UR} offset:{16*(W+15)}"); q.append(("w", W))
            else:
                s_ = r[2]; lo, hi = kreg_lo(s_)
                g(f"ds_read_b64 {lo if r[3] == 0 else hi}, v{V_KR} offset:{64*(63-s_) + 8*r[3]}"); q.append(("k", s_))
        def need(tags):
            last = -1
            for i, tg in enumerate(q):
                if tg in tags: last = i
            if last >= st["waited"]:
                if 'nord' not in OPT and 'nowait' not in OPT: g(f"s_waitcnt lgkmcnt({len(q)-1-last})")
                st["waited"] = last + 1
        LOOK = env('LOOK', 5); INIT = env('INIT', 10); MAXPER = env('MAXPER', 3)
        def prefetch(ji, limit):
            n = 0
            while st["rp"] < len(reads) and n < limit and (len(q) - st["waited"]) + 1 <= 13:
                r = reads[st["rp"]]
                if r[0] > ji + LOOK or not ok(r, ji): break
                issue(r); st["rp"] += 1; n += 1
        lastacc = {}; inited = set()
        ex = list(extra)
        prefetch(0, INIT)
        for ji, it in enumerate(items):
            if isinstance(it, list):
                while st["rp"] < len(reads) and reads[st["rp"]][0] <= ji:
                    room(1); issue(reads[st["rp"]]); st["rp"] += 1
                tags = set()
                for j in it:
                    if j[0] == "m": tags.add(("k", j[2]))
                    if j[3] > 16: tags.add(("w", j[3]))
                need(tags)
                if 'noprio' not in OPT: g("s_setprio 1")
                for j in it:
                    t = j[1]; acc = vq(V_ACC + 4*t)
                    cin = acc if t in inited else "0"
                    inited.add(t)
                    A = kreg(j[2]) if j[0] == "m" else vq(V_DF)
                    g(f"v_mfma_f32_16x16x32_bf16 {acc}, {A}, {wreg(j[3])}, {cin}")
                    lastacc[t] = len(g.L)
                if 'noprio' not in OPT: g("s_setprio 0")
                prefetch(ji + 1, MAXPER)
                for _ in range(env('EXPER', 3)):
                    if ex: g(ex.pop(0))
            elif it[0] == "add":
                t = it[1]
                gap = len(g.L) - lastacc[t]
                if gap < 8: g(f"s_nop {8 - gap - 1}")
                room(1)
                g(f"ds_write_b128 v{V_XW}, {vq(V_ACC+4*t)} offset:{8192*(t&1)}"); q.append(("x", t))
                if role == 1 and t == 0:
                    g("s_waitcnt vmcnt(0)")
                    L, Wr = stage_txt(3, 0, V_PT)
                    for x in L: g(x)
                    room(4)
                    for x in Wr:
                        g(x); q.append(("x", t))
            elif it[0] == "bar":
                t = it[1]
                assert not ex or t == 0, "extras must be placed before use"
                need({("x", t)})
                if 'nobar' not in OPT: g("s_barrier")
                if (t & 1) == role and 'noxr' in OPT:
                    while ex: g(ex.pop(0))
                if (t & 1) == role and 'noxr' not in OPT:
                    while ex: g(ex.pop(0))
                    room(4)
                    for k in range(4):
                        g(f"ds_read2st64_b32 {vp(V_XO+2*k)}, v{V_XR} offset0:{8*k+32*(t&1)} offset1:{8*k+4+32*(t&1)}"); q.append(("y", t))
            elif it[0] == "st":
                t = it[1]
                if (t & 1) == role and 'noxr' not in OPT:
                    need({("y", t)})
                    for k in range(4):
                        g(f"v_add_f32 v{V_XO+2*k}, v{V_XO+2*k}, v{V_XO+2*k+1}")
                    g(f"v_cvt_pk_bf16_f32 v{V_XO}, v{V_XO}, v{V_XO+2}")
                    g(f"v_cvt_pk_bf16_f32 v{V_XO+1}, v{V_XO+4}, v{V_XO+6}")
                    g(f"global_store_dwordx2 v{V_OG}, {vp(V_XO)}, {sp(S_OT+2*(t>>1))}")
                if 'nocs' not in OPT or t == 3: stamp_at(7 + t)
        assert st["rp"] == len(reads)

    g(f"""
v_and_b32 v{V_T0}, 15, v{V_LANE}
s_lshl_b32 s{S_T0}, s{S_IDX}, 6
s_lshl_b32 s{S_T2}, s{S_C}, 4
s_add_u32 s{S_T0}, s{S_T0}, s{S_T2}
v_add_u32 v{V_T2}, s{S_T0}, v{V_T0}
v_lshlrev_b32 v{V_T2}, 10, v{V_T2}
s_lshl_b32 s{S_T0}, s{S_XCD}, 7
v_add_u32 v{V_T2}, s{S_T0}, v{V_T2}
global_load_dword v{V_UST+7}, v{V_T2}, {sp(P_U)}
v_lshlrev_b32 v{V_TW}, 3, v{V_LANE}
v_add_u32 v{V_TW}, s{S_WB}, v{V_TW}
s_mov_b32 s{S_LC}, 0x3fb8aa3b
s_mov_b32 s{S_LC+1}, 0x3e22f983
""")
    for x in kr_lines() + ur_lines(): g(x)
    g(f"""
v_and_b32 v{V_T0}, 31, v{V_LANE}
v_lshrrev_b32 v{V_T1}, 5, v{V_LANE}
v_lshlrev_b32 v{V_T1}, 4, v{V_T1}
v_add_u32 v{V_T1}, s{S_WB}, v{V_T1}
v_min_u32 v{V_T2}, 24, v{V_T0}
v_mul_u32_u24 v{V_T2}, {RS}, v{V_T2}
v_add_u32 v{V_AR}, v{V_T1}, v{V_T2}
v_mul_u32_u24 v{V_T2}, {RS}, v{V_T0}
v_add_u32 v{V_BR}, v{V_T1}, v{V_T2}
v_add_u32 v{V_BR}, {NA*RS}, v{V_BR}
v_lshlrev_b32 v{V_T0}, 4, v{V_LANE}
s_add_u32 s{S_T0}, s{S_WB}, 1008
v_sub_u32 v{V_KW}, s{S_T0}, v{V_T0}
v_add_u32 v{V_SP}, s{S_WB}, v{V_T0}
s_mov_b32 s{S_ODD}, 0xaaaaaaaa
s_mov_b32 s{S_ODD+1}, 0xaaaaaaaa
""")
    for x in x_lines(0) + ot_lines([0, 2]): g(x)
    g(f"""
v_lshrrev_b32 v{V_T1}, 4, v{V_LANE}
v_mul_u32_u24 v{V_T1}, {UCH}, v{V_T1}
v_and_b32 v{V_T0}, 15, v{V_LANE}
v_lshl_add_u32 v{V_T1}, v{V_T0}, 4, v{V_T1}
s_mul_i32 s{S_T0}, s{S_C}, {UH}
s_add_u32 s{S_T0}, s{S_T0}, {UB}
v_add_u32 v{V_T1}, s{S_T0}, v{V_T1}
v_mov_b32 v{V_PT}, 0
v_mov_b32 v{V_PT+1}, 0
v_mov_b32 v{V_PT+2}, 0
v_mov_b32 v{V_PT+3}, 0
s_mov_b32 exec_lo, 0x7fff7fff
s_mov_b32 exec_hi, 0x7fff7fff
ds_write_b128 v{V_T1}, {vq(V_PT)}
s_mov_b64 exec, -1
""")
    dt_code(True)
    g("s_waitcnt vmcnt(3)")
    stamp_at(2)
    for M in (0, 1):
        unpack(MB(M)+R_AL, V_PAR, M); unpack(MB(M)+R_AL+1, V_PAR+1, M)
    both(lambda b: g(f"v_pk_mul_f32 {vp(b+R_AL)}, {vp(b+R_AL)}, {vp(V_DT)}"))
    direct(R_Z8, R_AL)
    g(f"v_mov_b32 v{V_DW}, 0x00003f80\nv_mov_b32 v{V_DW+1}, 0x00003f80")
    g(f"ds_write_b64 v{V_TW}, {vp(V_DW)} offset:{NA*RS}")
    wcount[0] = 1
    twrite(R_Z8, [NA+1])
    both(lambda b: cmul(b+R_Y, b+R_Z8, b+R_Z8, b+R_T))
    twrite(R_Y, [NA+2])
    for j in range(3, 32):
        both(lambda b: cmul(b+R_Y, b+R_Y, b+R_Z8, b+R_T))
        twrite(R_Y, [NA+j])
    for kb in range(16):
        g(f"ds_read_b128 {aq(4*kb)}, v{V_BR} offset:{32*kb}")
        if kb == 8: g("s_waitcnt lgkmcnt(4)")
    stamp_at(3)
    g("s_waitcnt vmcnt(0) lgkmcnt(0)\ns_barrier")
    pA = 1
    winsA = [-15 + 2*i for i in range(16)]
    q = []
    NPF = env('NPF', 7)
    def rdA(kb):
        g(f"ds_read_b128 {vq(V_AOP + 4*(kb % 8))}, v{V_AR} offset:{32*kb}"); q.append(("A", kb))
    def rdW(W):
        g(f"ds_read_b128 {aq(win_areg(W, pA))}, v{V_UR} offset:{16*(W+15)}"); q.append(("W", W))
    fill = []
    for kb in range(NPF): rdA(kb)
    for kb in range(16):
        last = max(i for i, t in enumerate(q) if t == ("A", kb))
        n_after = len(q) - 1 - last
        g(f"s_waitcnt lgkmcnt({min(n_after, 15)})")
        cin = f"v[{V_KD}:{V_KD+15}]" if kb else "0"
        g(f"v_mfma_f32_32x32x16_bf16 v[{V_KD}:{V_KD+15}], {vq(V_AOP+4*(kb%8))}, {aq(4*kb)}, {cin}")
        if kb + NPF < 16: rdA(kb + NPF)
        if kb >= 4 or True:
            pass
    g("s_barrier")
    for i, W in enumerate(winsA):
        rdW(W)
        if i == 11: g("s_waitcnt lgkmcnt(8)")
    stamp_at(4)
    D = V_KD
    S0, S1, S2, S8, S10, S11, T10, T11 = [V_S + i for i in range(8)]
    def shift(dst, cur, nxt):
        g(f"v_mov_b32_dpp v{dst}, v{nxt} wave_rol:1 row_mask:0xf bank_mask:0xf")
        g(f"v_mov_b32_dpp v{dst}, v{cur} wave_shl:1 row_mask:0xf bank_mask:0xf")
    def val(p, beta):
        if p == 0: return D+beta if beta <= 7 else [S0, S1, S2][beta-8]
        if p == 1: return D+8 if beta <= 2 else (D+9 if beta <= 5 else S8)
        v, S, T = (D+10, S10, T10) if p == 2 else (D+11, S11, T11)
        return v if beta <= 3 else (T if beta == 4 else S)
    def epi(m):
        shift(S0, D+0, D+8)
        if m == 1:
            shift(S1, D+1, D+8); shift(S2, D+2, D+8)
        shift(S8, D+8, D+10); shift(S10, D+10, D+11); shift(S11, D+11, D+12)
        g(f"v_cndmask_b32 v{T10}, v{D+10}, v{S10}, {sp(S_ODD)}")
        g(f"v_cndmask_b32 v{T11}, v{D+11}, v{S11}, {sp(S_ODD)}")
        n = 0
        for p in range(4):
            for e in (0, 1):
                rho = 2*m + e
                c = V_CH + 4 * (n % 4); n += 1
                for d in range(4):
                    g(f"v_cvt_pk_bf16_f32 v{c+d}, v{val(p, rho+7-2*d)}, v{val(p, rho+6-2*d)}")
                g(f"ds_write_b128 v{V_KW}, {vq(c)} offset:{e*CP1 + 1024*(3-p)}")
        g(f"s_mov_b64 exec, 15")
        for r in range(4): g(f"v_mov_b32 v{V_S+r}, 0")
        g(f"ds_write_b128 v{V_SP}, {vq(V_S)} offset:4096")
        g(f"ds_write_b128 v{V_SP}, {vq(V_S)} offset:{CP1+4096}")
        g(f"s_mov_b64 exec, 1")
        for e in (0, 1):
            rho = 2*m + e
            if rho == 0: continue
            def kv(i): return f"v{D+i}" if i >= 0 else "0"
            g(f"v_cvt_pk_bf16_f32 v{V_S+4+2*e}, {kv(rho-1)}, {kv(rho-2)}")
            g(f"v_cvt_pk_bf16_f32 v{V_S+5+2*e}, {kv(rho-3)}, {kv(rho-4)}")
            g(f"ds_write_b64 v{V_SP}, {vp(V_S+4+2*e)} offset:{e*CP1+4096}")
        g(f"s_mov_b64 exec, -1")
    g(f"s_cmp_eq_u32 s{S_M}, 0\ns_cbranch_scc0 L_epi1")
    epi(0)
    g("s_branch L_epi_done\nL_epi1:")
    epi(1)
    g("L_epi_done:")
    stamp_at(5)
    g("s_waitcnt lgkmcnt(0)\ns_barrier")
    stamp_at(6)
    conv(1, 0, [])
    g("s_branch L_fin" if stamps else "s_endpgm")
    g("L_roleB:")
    g("L_pgB:\ns_cbranch_execz L_back")
    for t in (1, 2, 3):
        g(f"s_add_u32 s{S_UT+2*t}, s{P_U}, {t*0x80000}\ns_addc_u32 s{S_UT+2*t+1}, s{P_U+1}, 0")
    uload(P_U, 0); uload(S_UT+2, 1)
    g(f"s_mov_b32 s{S_C256}, 0x43800000\ns_mov_b32 s{S_C256+1}, 0x43800000")
    for x in ot_lines([1, 3]): g(x)
    g(f"""
v_and_b32 v{V_T0}, 1, v{V_LANE}
v_bfe_u32 v{V_T1}, v{V_LANE}, 1, 3
v_lshlrev_b32 v{V_T1}, 2, v{V_T1}
v_xor_b32 v{V_PT+1}, 1, v{V_T0}
v_mul_u32_u24 v{V_PT+1}, 3, v{V_PT+1}
v_add_u32 v{V_PT+2}, 1, v{V_T0}
s_cmp_eq_u32 s{S_M}, 0
s_cselect_b64 vcc, -1, 0
v_cndmask_b32 v{V_PT+1}, v{V_PT+2}, v{V_PT+1}, vcc
v_add_u32 v{V_T1}, v{V_T1}, v{V_PT+1}
v_lshrrev_b32 v{V_T2}, 4, v{V_LANE}
v_lshlrev_b32 v{V_T2}, 3, v{V_T2}
v_sub_u32 v{V_DF}, v{V_T1}, v{V_T2}
""")
    dt_code(False)
    g(f"""
s_lshl_b32 s{S_T0}, s{S_C}, 4
s_lshr_b64 {sp(S_DSK)}, {sp(S_DSK)}, s{S_T0}
s_and_b32 s{S_DSK}, s{S_DSK}, 0xffff
v_and_b32 v{V_T0}, 1, v{V_DF}
v_lshlrev_b32 v{V_T0}, 4, v{V_T0}
v_mov_b32 v{V_T1}, s{S_DSK}
v_lshlrev_b32 v{V_T1}, v{V_T0}, v{V_T1}
v_ashrrev_i32 v{V_T2}, 1, v{V_DF}
""")
    for d in range(4):
        g(f"v_cmp_eq_u32 vcc, {d}, v{V_T2}\ns_nop 1\nv_cndmask_b32 v{V_DF+d}, 0, v{V_T1}, vcc")
    g("s_waitcnt vmcnt(4)")
    stamp_at(2)
    for M in (0, 1):
        unpack(MB(M)+R_AL, V_PAR, M); unpack(MB(M)+R_AL+1, V_PAR+1, M)
        unpack(MB(M)+R_B, V_PAR+2, M); unpack(MB(M)+R_B+1, V_PAR+3, M)
        unpack(MB(M)+R_CC, V_PAR+4, M); unpack(MB(M)+R_CC+1, V_PAR+5, M)
    both(lambda b: g(f"v_pk_mul_f32 {vp(b+R_AL)}, {vp(b+R_AL)}, {vp(V_DT)}"))
    both(lambda b: cmul(b+R_C, b+R_CC, b+R_B, b+R_T))
    both(lambda b: g(f"v_pk_mul_f32 {vp(b+R_C)}, {vp(b+R_C)}, {vp(V_DT+2)} neg_hi:[1,0]"))
    direct(R_Z1, R_AL)
    both(lambda b: g(f"v_pk_mul_f32 {vp(b+R_T)}, {vp(b+R_AL)}, {sp(S_C256)}"))
    direct(R_Z256, R_T)
    rowpos = {0:[0],1:[1],2:[2],3:[3],256:[4,5],258:[6],260:[7,12,13],4:[8],5:[9],6:[10],7:[11],262:[14],264:[15],
              512:[16],516:[17],1024:[18],1536:[19],768:[20],772:[21],1280:[22],1792:[23],2048:[24]}
    wcount[0] = 0
    twrite(R_C, rowpos[0])
    both(lambda b: cmul(b+R_Z2, b+R_Z1, b+R_Z1, b+R_T))
    both(lambda b: cmul(b+R_Z4, b+R_Z2, b+R_Z2, b+R_T))
    prev = R_C
    for r in range(1, 8):
        dst = {2:R_X2, 4:R_X4, 6:R_X6}.get(r, R_X)
        both(lambda b: cmul(b+dst, b+prev, b+R_Z1, b+R_T, conj=True))
        twrite(dst, rowpos[r])
        prev = dst
    uload_to(S_UT+4, V_ACC)
    both(lambda b: cmul(b+R_E, b+R_C, b+R_Z256, b+R_T, conj=True))
    twrite(R_E, rowpos[256])
    for src, r in ((R_X2, 258), (R_X6, 262), (R_X4, 260)):
        both(lambda b: cmul(b+R_X, b+src, b+R_Z256, b+R_T, conj=True))
        twrite(R_X, rowpos[r])
    both(lambda b: cmul(b+R_X, b+R_X, b+R_Z4, b+R_T, conj=True))
    twrite(R_X, rowpos[264])
    for k in range(2, 9):
        both(lambda b: cmul(b+R_E, b+R_E, b+R_Z256, b+R_T, conj=True))
        twrite(R_E, rowpos[256*k])
        if k in (2, 3):
            both(lambda b: cmul(b+R_X, b+R_E, b+R_Z4, b+R_T, conj=True))
            twrite(R_X, rowpos[256*k+4])
    stamp_at(3)
    g("s_waitcnt lgkmcnt(0)\ns_barrier")
    g("s_waitcnt vmcnt(2)")
    stage(0, 0, V_PT); stage(1, 1, V_PT)
    uload(S_UT+6, 0)
    g("s_waitcnt lgkmcnt(0)\ns_barrier")
    g("s_waitcnt vmcnt(2)")
    stage(2, V_ACC, V_PT)
    stamp_at(4)
    for i in range(16):
        W = -14 + 2*i
        g(f"ds_read_b128 {aq(win_areg(W, 0))}, v{V_UR} offset:{16*(W+15)}")
        if i == 8: g("s_waitcnt lgkmcnt(4)")
    stamp_at(5)
    g("s_waitcnt lgkmcnt(0)\ns_barrier")
    stamp_at(6)
    conv(0, 1, [])
    g("L_fin:")
    if stamps:
        g("s_waitcnt vmcnt(0)")
        stamp_at(11)
        g("s_memrealtime s[74:75]")
        g("s_waitcnt lgkmcnt(0)")
        g("s_load_dwordx2 s[14:15], s[0:1], 80")
        g("s_load_dwordx2 s[12:13], s[0:1], 88")
        g("s_waitcnt lgkmcnt(0)")
        g(f"s_lshl_b32 s11, s2, 3\ns_add_u32 s11, s11, s{S_W}\ns_lshl_b32 s11, s11, 7")
        g("s_add_u32 s12, s12, s11\ns_addc_u32 s13, s13, 0")
        g("s_mov_b64 exec, 1")
        g("v_mov_b32 v13, 0")
        for i in range(12):
            if i == 0: g("v_mov_b32 v14, s76")
            else: g(f"s_sub_u32 s66, s{76+2*i}, s76\nv_mov_b32 v14, s66")
            g(f"global_store_dword v13, v14, s[12:13] offset:{4*i}")
            g(f"s_cmp_eq_u32 s11, 0\ns_cbranch_scc0 L_nd{i}\nglobal_store_dword v13, v14, s[14:15] offset:{4*i}\nL_nd{i}:")
        g("s_sub_u32 s66, s98, s76\nv_mov_b32 v14, s66\nglobal_atomic_umax v13, v14, s[14:15] offset:48")
        g("s_sub_u32 s66, s80, s76\nv_mov_b32 v14, s66\nglobal_atomic_umax v13, v14, s[14:15] offset:52")
        g("v_mov_b32 v14, s74\nglobal_atomic_umax v13, v14, s[14:15] offset:56")
        g("s_not_b32 s66, s72\nv_mov_b32 v14, s66\nglobal_atomic_umax v13, v14, s[14:15] offset:60")
        g("v_mov_b32 v14, s72\nglobal_store_dword v13, v14, s[12:13] offset:120")
        g("v_mov_b32 v14, s74\nglobal_store_dword v13, v14, s[12:13] offset:124")
        g("s_waitcnt vmcnt(0)")
    g("L_end:\ns_endpgm")
    return g

HEADER = """; Kernarg layout (96 bytes): u, A_re, A_im, B_re, B_im, C_re, C_im, log_dt, Dskip, out, debug, ws (8 bytes each)
; @launch grid=(256,1,1) block=(512,1,1) lds=%d
.amdgcn_target "amdgcn-amd-amdhsa--gfx950"
.text
.globl standalone__ssm_conv_s4__prompt_kernel
.p2align 12
.fill 0x340, 4, 0xBF800000
.p2align 8
.type standalone__ssm_conv_s4__prompt_kernel,@function
standalone__ssm_conv_s4__prompt_kernel:
""" % LDS_TOTAL
def footer(ns): return """.section .rodata,"a"
.p2align 6
.amdhsa_kernel standalone__ssm_conv_s4__prompt_kernel
  .amdhsa_next_free_vgpr 256
  .amdhsa_next_free_sgpr %d
  .amdhsa_accum_offset 128
  .amdhsa_group_segment_fixed_size 0
  .amdhsa_kernarg_size 96
  .amdhsa_user_sgpr_count 2
  .amdhsa_user_sgpr_kernarg_segment_ptr 1
  .amdhsa_system_sgpr_workgroup_id_x 1
.end_amdhsa_kernel
""" % ns
def assemble_sizes(text):
    import subprocess, re, tempfile
    sys.path.insert(0, "cdna_kernels")
    open("_p.s", "w").write(text)
    r = subprocess.run(["clang", "-x", "assembler", "-target", "amdgcn-amd-amdhsa", "-mcpu=gfx950", "-c", "_p.s", "-o", "_p.o"], capture_output=True, text=True)
    assert r.returncode == 0, r.stderr
    d = subprocess.run(["llvm-objdump", "-d", "--mcpu=gfx950", "_p.o"], capture_output=True, text=True).stdout
    addrs = []
    started = False
    for ln in d.split("\n"):
        if "<standalone__ssm_conv_s4__prompt_kernel>:" in ln: started = True; continue
        if not started: continue
        m = re.search(r"// ([0-9A-F]{12}):", ln)
        if m: addrs.append(int(m.group(1), 16))
    return addrs

if __name__ == "__main__":
    out = sys.argv[1]
    st = len(sys.argv) > 2 and sys.argv[2] == "stamps"
    g = gen(st)
    def isinstr(l): return not (l.endswith(":") or l.startswith(".") or l.startswith(";"))
    for pg in (1, 2):
        tmp = G(); tmp.L = list(g.L)
        have = [l for l in tmp.L if l.startswith("L_pg") and l.endswith(":")]
        for k in (1, 2):
            if f"L_pg{k}:" not in have: tmp.L.append(f"L_pg{k}:"); tmp.L.append("s_endpgm")
        addrs = assemble_sizes(HEADER + tmp.text() + footer(102 if st else 72))
        base = addrs[0]
        idx = [i for i, l in enumerate(g.L) if isinstr(l)]
        pos = None
        for n, i in enumerate(idx):
            if addrs[n] - base >= pg * 4096:
                pos = i; break
        if pos is None:
            g.L += [f"L_pg{pg}:", "s_cbranch_execz L_back", "s_endpgm"]
        else:
            g.L[pos:pos] = [f"L_pg{pg}:", "s_cbranch_execz L_back"]
    open(out, "w").write(HEADER + g.text() + footer(102 if st else 72))
    print("LDS", LDS_TOTAL, "lines", len(g.L))
```

```python
import sys, os
OPT = os.environ.get('OPT', '').split(',')
def env(n, d): return int(os.environ.get(n, d))

class G:
    def __init__(self): self.L = []
    def __call__(self, s):
        for ln in s.strip("\n").split("\n"):
            ln = ln.strip()
            if ln: self.L.append(ln)
    def text(self):
        out = []
        for l in self.L:
            out.append(l if (l.endswith(":") or l.startswith(".") or l.startswith(";")) else "    " + l)
        return "\n".join(out) + "\n"

def vp(i): return f"v[{i}:{i+1}]"
def vq(i): return f"v[{i}:{i+3}]"
def aq(i): return f"a[{i}:{i+3}]"
def sp(i): return f"s[{i}:{i+1}]"

RS = 528; NA = 25; WR = 30208
UB = 4 * WR; UCH = 5120; UH = 1280
XB = UB + 4 * UCH
LDS_TOTAL = XB + 16384
CP1 = 4224

S_W, S_XCD, S_IDX, S_M, S_D0, S_D, S_C, S_R = 3, 4, 5, 6, 7, 8, 9, 10
P_U, P_ARE, P_AIM, P_BRE, P_BIM, P_CRE, P_CIM, P_LDT = 16, 18, 20, 22, 24, 26, 28, 30
P_DSK, P_OUT = 32, 34
S_LDT, S_DSK = 36, 38
S_C256, S_LC = 42, 44
S_PLO, S_PHI = 46, 47
S_ODD = 48
S_L0 = 40
S_UT = 50
S_OT = 58
S_T0, S_T1, S_T2, S_T3 = 66, 67, 68, 69
S_WB = 70
S_D02 = 71

V_LANE = 1
V_TW, V_AR, V_BR, V_KW, V_KR, V_UR, V_US, V_UG, V_XW, V_XR, V_OG = 2, 3, 4, 5, 6, 7, 8, 9, 10, 11, 12
V_T0, V_T1, V_T2 = 13, 14, 15
V_UST = 16
V_DF = 24
V_DT = 28
V_ACC = 32
V_MB = 48
MSZ = 30
def MB(M): return V_MB + MSZ * M
R_AL, R_C, R_Z1, R_Z2, R_Z4, R_Z256, R_T, R_X, R_E, R_X2, R_X4, R_X6, R_B, R_CC, R_M = [2*i for i in range(15)]
R_Z8, R_Y = R_Z1, R_X
V_DW = 112
V_KD = 112
V_AOP = 48
V_S = 80
V_CH = 88
V_RK = 88
V_RW = 48
V_XO = 104
V_PT = 120
V_PO = 123
V_U2 = 124
V_SP = 24
V_PAR = 106

def gen(stamps=False):
    g = G()
    def stamp_raw(i):
        if stamps: g(f"s_memtime s[{76+2*i}:{77+2*i}]")
    def stamp_at(i):
        if 'convprof' in OPT:
            if i == 6: stamp_raw(0)
            if i == 11: stamp_raw(11)
            return
        stamp_raw(i)
    def common_early():
        g(f"""
v_lshrrev_b32 v{V_UG}, 2, v{V_LANE}
v_lshlrev_b32 v{V_UG}, 5, v{V_UG}
v_and_b32 v{V_T2}, 3, v{V_LANE}
v_lshl_add_u32 v{V_UG}, v{V_T2}, 1, v{V_UG}
s_lshl_b32 s{S_T0}, s{S_C}, 3
v_add_u32 v{V_UG}, s{S_T0}, v{V_UG}
v_lshlrev_b32 v{V_UG}, 10, v{V_UG}
v_add_u32 v{V_UG}, s{S_D02}, v{V_UG}
v_lshlrev_b32 v{V_TW}, 3, v{V_LANE}
v_add_u32 v{V_TW}, s{S_WB}, v{V_TW}
s_mov_b32 s{S_LC}, 0x3fb8aa3b
s_mov_b32 s{S_LC+1}, 0x3e22f983
""")
    def unpack(dst, src, M):
        if M == 0: g(f"v_lshlrev_b32 v{dst}, 16, v{src}")
        else: g(f"v_and_b32 v{dst}, 0xffff0000, v{src}")

    def uload(base, slot):
        g(f"global_load_dwordx2 {vp(V_UST+4*slot)}, v{V_UG}, {sp(base)}")
        g(f"global_load_dwordx2 {vp(V_UST+4*slot+2)}, v{V_UG}, {sp(base)} offset:1024")
    def uload_to(base, reg):
        g(f"global_load_dwordx2 {vp(reg)}, v{V_UG}, {sp(base)}")
        g(f"global_load_dwordx2 {vp(reg+2)}, v{V_UG}, {sp(base)} offset:1024")
    def stage_txt(t, slot, tmp4):
        b = V_UST + 4*slot if slot < 8 else slot
        L = [f"v_perm_b32 v{V_T0}, v{b+2}, v{b}, s{S_PLO}",
             f"v_perm_b32 v{V_T1}, v{b+2}, v{b}, s{S_PHI}",
             f"v_perm_b32 v{V_T2}, v{b+3}, v{b+1}, s{S_PLO}",
             f"v_perm_b32 v{tmp4}, v{b+3}, v{b+1}, s{S_PHI}"]
        W = [f"ds_write_b32 v{V_US}, v{r} offset:{UCH*c + 256*t}" for c, r in enumerate((V_T0, V_T1, V_T2, tmp4))]
        return L, W
    def stage(t, slot, tmp4):
        L, W = stage_txt(t, slot, tmp4)
        for x in L + W: g(x)
    def us_addr():
        g(f"""
s_mul_i32 s{S_T0}, s{S_C}, {UH}
s_add_u32 s{S_T0}, s{S_T0}, {UB + 240}
v_lshlrev_b32 v{V_US}, 2, v{V_LANE}
v_add_u32 v{V_US}, s{S_T0}, v{V_US}
s_mov_b32 s{S_PLO}, 0x05040100
s_mov_b32 s{S_PHI}, 0x07060302
""")
    def dt_code(scale8):
        g(f"""
s_waitcnt lgkmcnt(0)
s_lshl_b32 s{S_T0}, s{S_C}, 4
s_lshr_b64 {sp(S_LDT)}, {sp(S_LDT)}, s{S_T0}
s_lshl_b32 s{S_LDT}, s{S_LDT}, 16
v_mov_b32 v{V_T0}, s{S_LC}
v_mul_f32 v{V_T1}, s{S_LDT}, v{V_T0}
v_fma_f32 v{V_T2}, s{S_LDT}, v{V_T0}, -v{V_T1}
v_mov_b32 v{V_T0}, 0x32a57060
v_fma_f32 v{V_T2}, s{S_LDT}, v{V_T0}, v{V_T2}
v_exp_f32 v{V_T1}, v{V_T1}
v_mul_f32 v{V_T2}, 0x3f317218, v{V_T2}
v_fma_f32 v{V_T1}, v{V_T1}, v{V_T2}, v{V_T1}
v_cvt_pk_bf16_f32 v{V_T1}, v{V_T1}, v{V_T1}
v_lshlrev_b32 v{V_DT+2}, 16, v{V_T1}
""")
        if scale8:
            g(f"v_mul_f32 v{V_DT+2}, 0x41000000, v{V_DT+2}")
        g(f"v_mov_b32 v{V_DT+3}, v{V_DT+2}")
        g(f"v_pk_mul_f32 {vp(V_DT)}, {vp(V_DT+2)}, {sp(S_LC)}")
    def cmul(dst, a, bb, tmp, conj=False):
        g(f"v_pk_mul_f32 {vp(tmp)}, {vp(a)}, {vp(bb)} op_sel_hi:[1,0]")
        neg = "neg_hi:[0,1,0]" if conj else "neg_lo:[0,1,0]"
        g(f"v_pk_fma_f32 {vp(dst)}, {vp(a)}, {vp(bb)}, {vp(tmp)} op_sel:[1,1,0] op_sel_hi:[0,1,1] {neg}")
    def both(f):
        for M in (0, 1): f(MB(M))
    def direct(dst, arg):
        both(lambda b: g(f"v_exp_f32 v{b+R_M}, v{b+arg}"))
        both(lambda b: g(f"v_fract_f32 v{b+R_M+1}, v{b+arg+1}"))
        both(lambda b: g(f"v_cos_f32 v{b+dst}, v{b+R_M+1}"))
        both(lambda b: g(f"v_sin_f32 v{b+dst+1}, v{b+R_M+1}"))
        g("s_nop 0")
        both(lambda b: g(f"v_pk_mul_f32 {vp(b+dst)}, {vp(b+dst)}, {vp(b+R_M)} op_sel_hi:[1,0]"))
    wcount = [0]
    def twrite(src_off, positions):
        p = V_DW + 2 * (wcount[0] % 4); wcount[0] += 1
        for M in (0, 1):
            b = MB(M)
            g(f"v_cvt_pk_bf16_f32 v{p+M}, v{b+src_off}, v{b+src_off+1}")
        for pos in positions:
            g(f"ds_write_b64 v{V_TW}, {vp(p)} offset:{pos*RS}")
    def kr_lines():
        return f"""
v_and_b32 v{V_T0}, 1, v{V_LANE}
v_bfe_u32 v{V_T1}, v{V_LANE}, 1, 3
s_xor_b32 s{S_T0}, s{S_M}, 1
v_xor_b32 v{V_T2}, 1, v{V_T0}
v_and_b32 v{V_T2}, s{S_T0}, v{V_T2}
v_add_u32 v{V_T2}, v{V_T1}, v{V_T2}
v_lshlrev_b32 v{V_T2}, 3, v{V_T2}
v_mul_u32_u24 v{V_KR}, {CP1}, v{V_T0}
v_sub_u32 v{V_KR}, v{V_KR}, v{V_T2}
v_lshrrev_b32 v{V_T2}, 4, v{V_LANE}
v_lshlrev_b32 v{V_T2}, 4, v{V_T2}
v_add_u32 v{V_KR}, v{V_KR}, v{V_T2}
s_add_u32 s{S_T0}, s{S_WB}, 64
v_add_u32 v{V_KR}, s{S_T0}, v{V_KR}
""".strip().split("\n")
    def ur_lines():
        return f"""
v_lshrrev_b32 v{V_T1}, 4, v{V_LANE}
v_mul_u32_u24 v{V_T1}, {UH}, v{V_T1}
v_and_b32 v{V_T0}, 15, v{V_LANE}
v_lshlrev_b32 v{V_T2}, 4, v{V_T0}
v_add_u32 v{V_UR}, v{V_T1}, v{V_T2}
s_mul_i32 s{S_T0}, s{S_C}, {UCH}
s_add_u32 s{S_T0}, s{S_T0}, {UB}
v_add_u32 v{V_UR}, s{S_T0}, v{V_UR}
""".strip().split("\n")
    def x_lines(role):
        return f"""
v_lshlrev_b32 v{V_T1}, 4, v{V_LANE}
s_lshl_b32 s{S_T0}, s{S_C}, 11
s_add_u32 s{S_T0}, s{S_T0}, {XB + 1024*role}
v_add_u32 v{V_XW}, s{S_T0}, v{V_T1}
v_and_b32 v{V_T0}, 7, v{V_LANE}
v_lshrrev_b32 v{V_T1}, 5, v{V_LANE}
v_lshl_add_u32 v{V_T0}, v{V_T1}, 3, v{V_T0}
v_bfe_u32 v{V_T1}, v{V_LANE}, 3, 2
v_lshlrev_b32 v{V_XR}, 4, v{V_T0}
v_lshl_add_u32 v{V_XR}, v{V_T1}, 2, v{V_XR}
s_lshl_b32 s{S_T0}, s{S_C}, 8
s_add_u32 s{S_T0}, s{S_T0}, {XB}
v_add_u32 v{V_XR}, s{S_T0}, v{V_XR}
v_lshlrev_b32 v{V_OG}, 5, v{V_T0}
v_lshrrev_b32 v{V_T2}, 1, v{V_T1}
v_lshl_add_u32 v{V_OG}, v{V_T2}, 2, v{V_OG}
v_and_b32 v{V_T1}, 1, v{V_T1}
v_xor_b32 v{V_T2}, 1, v{V_T1}
v_mul_u32_u24 v{V_T2}, 3, v{V_T2}
v_add_u32 v{V_T1}, 1, v{V_T1}
s_cmp_eq_u32 s{S_M}, 0
s_cselect_b64 vcc, -1, 0
v_cndmask_b32 v{V_T1}, v{V_T1}, v{V_T2}, vcc
v_add_u32 v{V_OG}, v{V_OG}, v{V_T1}
s_lshl_b32 s{S_T0}, s{S_C}, 3
v_add_u32 v{V_OG}, s{S_T0}, v{V_OG}
v_lshlrev_b32 v{V_OG}, 10, v{V_OG}
v_add_u32 v{V_OG}, s{S_D02}, v{V_OG}
""".strip().split("\n")
    def ot_lines(tiles):
        L = []
        for i, t in enumerate(tiles):
            L += [f"s_add_u32 s{S_OT+2*i}, s{P_OUT}, {t*0x80000}", f"s_addc_u32 s{S_OT+2*i+1}, s{P_OUT+1}, 0"]
        return L

    if stamps: g("s_memrealtime s[72:73]")
    stamp_at(0)
    g(f"""
s_cmp_ge_u32 s2, 256
s_cbranch_scc1 L_end
s_load_dwordx16 s[16:31], s[0:1], 0
s_load_dwordx4 s[32:35], s[0:1], 64
v_lshrrev_b32 v{V_T0}, 6, v0
v_and_b32 v{V_LANE}, 63, v0
v_readfirstlane_b32 s{S_W}, v{V_T0}
s_and_b32 s{S_XCD}, s2, 7
s_lshr_b32 s{S_IDX}, s2, 3
s_and_b32 s{S_M}, s{S_IDX}, 1
s_lshr_b32 s{S_T0}, s{S_IDX}, 1
s_lshl_b32 s{S_T0}, s{S_T0}, 2
s_lshl_b32 s{S_D0}, s{S_XCD}, 6
s_add_u32 s{S_D0}, s{S_D0}, s{S_T0}
s_and_b32 s{S_C}, s{S_W}, 3
s_lshr_b32 s{S_R}, s{S_W}, 2
s_add_u32 s{S_D}, s{S_D0}, s{S_C}
s_lshl_b32 s{S_D02}, s{S_D0}, 1
s_mul_i32 s{S_WB}, s{S_C}, {WR}
s_lshl_b32 s{S_T0}, s{S_D}, 8
v_lshlrev_b32 v{V_PO}, 2, v{V_LANE}
v_add_u32 v{V_PO}, s{S_T0}, v{V_PO}
v_mov_b32 v{V_UG}, 0
v_mov_b32 v{V_OG}, 0
s_cmp_eq_u32 s{S_R}, 0
s_cbranch_scc0 L_Bearly
s_mov_b64 exec, 0
s_cmp_eq_u32 s{S_W}, 0
s_cbranch_scc1 L_pg1
s_cmp_eq_u32 s{S_W}, 1
s_cbranch_scc1 L_pg2
s_cmp_eq_u32 s{S_W}, 2
s_cbranch_scc1 L_pgB
s_branch L_back
L_Bearly:
""")
    common_early(); us_addr()
    for x in kr_lines() + ur_lines() + x_lines(1): g(x)
    g(f"""
L_back:
s_mov_b64 exec, -1
s_cmp_eq_u32 s{S_R}, 0
s_waitcnt lgkmcnt(0)
""")
    stamp_at(1)
    g(f"global_load_dword v{V_PAR}, v{V_PO}, {sp(P_ARE)}")
    g(f"global_load_dword v{V_PAR+1}, v{V_PO}, {sp(P_AIM)}")
    g("s_cbranch_scc1 L_skipB")
    for i, p in enumerate([P_BRE, P_BIM, P_CRE, P_CIM]):
        g(f"global_load_dword v{V_PAR+2+i}, v{V_PO}, {sp(p)}")
    g(f"s_add_u32 s{P_DSK}, s{P_DSK}, s{S_D02}\ns_addc_u32 s{P_DSK+1}, s{P_DSK+1}, 0")
    g(f"s_load_dwordx2 {sp(S_DSK)}, {sp(P_DSK)}, 0")
    g("s_branch L_par_done")
    g("L_skipB:")
    g(f"v_mov_b32 v{V_T0}, 0")
    g(f"global_load_dword v{V_PAR+2}, v{V_T0}, {sp(P_U)}")
    g(f"global_load_dword v{V_PAR+3}, v{V_T0}, {sp(P_OUT)}")
    g("L_par_done:")
    g(f"s_add_u32 s{P_LDT}, s{P_LDT}, s{S_D02}\ns_addc_u32 s{P_LDT+1}, s{P_LDT+1}, 0")
    g(f"s_load_dwordx2 {sp(S_LDT)}, {sp(P_LDT)}, 0")
    g(f"s_cmp_eq_u32 s{S_R}, 0")
    g("s_barrier")
    g(f"s_cbranch_scc0 L_roleB")

    def win_areg(W, p): return 64 + 4 * ((W + 15 - (1 - p)) // 2)
    def conv(p, role, extra):
        par = lambda lo, hi: [x for x in range(lo, hi) if x % 2 == p]
        M_ = lambda t, sig: ("m", t, sig, 16*t - sig)
        D_ = lambda t: ("d", t, None, 16*t)
        jobs = []; done_at = {}
        for s_ in par(0, 16):
            jobs += [M_(0, s_), M_(1, s_)]
            if p == 0 and s_ == 0: jobs.append(D_(0))
        done_at[0] = max(i for i, j in enumerate(jobs) if j[1] == 0)
        for s_ in par(16, 32):
            jobs += [M_(1, s_), M_(2, s_)]
            if p == 0 and s_ == 16: jobs.append(D_(1))
        done_at[1] = max(i for i, j in enumerate(jobs) if j[1] == 1)
        for s_ in par(32, 48): jobs += [M_(2, s_), M_(3, s_)]
        for W in par(17, 33):
            jobs += [M_(2, 32 - W), M_(3, 48 - W)]
            if p == 0 and W == 32: jobs.append(D_(2))
        done_at[2] = max(i for i, j in enumerate(jobs) if j[1] == 2)
        a_ = par(48, 64); b_ = par(33, 49)
        for i in range(8):
            jobs.append(M_(3, a_[i])); jobs.append(M_(3, 48 - b_[i]))
        if p == 0: jobs.append(D_(3))
        done_at[3] = len(jobs) - 1
        N = len(jobs)
        def kreg(sig):
            if sig < 32: return aq(4 * (sig // 2))
            return vq(V_RK + 4 * (((sig - 32) // 2) % 4))
        def kreg_lo(sig):
            if sig < 32: return f"a[{4*(sig//2)}:{4*(sig//2)+1}]", f"a[{4*(sig//2)+2}:{4*(sig//2)+3}]"
            bb = V_RK + 4 * (((sig - 32) // 2) % 4)
            return vp(bb), vp(bb + 2)
        def wreg(W):
            if W <= 16: return aq(win_areg(W, p))
            return vq(V_RW + 4 * (((W - 17) // 2) % 4))
        gaps = {i: [] for i in range(-1, N)}
        nlds = {i: 0 for i in range(-1, N)}
        DA, DB, DR, DS = env('DA', 3), env('DB', 7), env('DR', 0), env('DS', 6)
        barpos = {}
        orig = {}
        def put(i, op, lds=False):
            orig[op] = i
            i = min(i, N - 1)
            gaps[i].append(op)
            if lds: nlds[i] += 1
            return i
        for t in range(4):
            j = done_at[t]
            put(j + DA, ("xw", t), True)
            bp = put(j + DB, ("bar", t))
            barpos[t] = bp
            if (t & 1) == role:
                if role == 1:
                    put(j + DB, ("rdout", t))
                else:
                    for k in range(4): put(bp + DR + k, ("xr", t, k), True)
                    put(bp + DR + DS, ("xa", t, 0)); put(bp + DR + DS + 1, ("xa", t, 1)); put(bp + DR + DS + 2, ("xa", t, 2)); put(bp + DR + DS + 3, ("st", t))
            if role == 1 and t == 0:
                put(j + DB, ("stage", 3))
        if role == 1:
            gaps[-1].append(("stage", 2))
        first = {}; last = {}
        for i, j in enumerate(jobs):
            keys = [("w", j[3])] + ([("k", j[2])] if j[0] == "m" else [])
            for k in keys:
                first.setdefault(k, i); last[k] = i
        reads = []
        for k, i in sorted(first.items(), key=lambda x: x[1]):
            if k[0] == "w":
                if k[1] <= 16: continue
                rel = barpos[0] if k[1] <= 32 else barpos[1]
                if k[1] - 8 >= 17: rel = max(rel, last[("w", k[1] - 8)])
                reads.append((i, rel, ("w", k[1])))
            else:
                rel = -1
                if k[1] >= 40: rel = last[("k", k[1] - 8)]
                reads.append((i, rel, ("k", k[1], 0))); reads.append((i, rel, ("k", k[1], 1)))
        LMAX, LMIN, INIT = env('LMAX', 14), env('LMIN', 5), env('INIT', 10)
        pos = -1; ninit = 0
        for (d, rel, key) in reads:
            g0 = max(rel, d - LMAX, pos)
            if g0 <= -1 and ninit < INIT:
                i = -1; ninit += 1
            else:
                i = max(g0, 0)
                while nlds[i] >= 1 and i < d - LMIN: i += 1
                i = min(i, d - env('GRP', 1) - (d % env('GRP', 1)) if env('GRP', 1) > 1 else d - 1)
                i = max(i, rel)
            gaps[i].append(("rd", key)); nlds[i] += 1; pos = i
        q = []; st = {"waited": 0}
        def room(n):
            out = len(q) - st["waited"]
            if out + n > 15:
                keep = 15 - n
                g(f"s_waitcnt lgkmcnt({keep})"); st["waited"] = len(q) - keep
        def need(tags):
            lastq = -1
            for i, tg in enumerate(q):
                if tg in tags: lastq = i
            if lastq >= st["waited"]:
                g(f"s_waitcnt lgkmcnt({len(q)-1-lastq})"); st["waited"] = lastq + 1
        lastacc = {}; inited = set()
        def emit(op):
            k = op[0]
            if k == "rd":
                key = op[1]; room(1)
                if key[0] == "w":
                    g(f"ds_read_b128 {wreg(key[1])}, v{V_UR} offset:{16*(key[1]+15)}"); q.append(("w", key[1]))
                else:
                    lo, hi = kreg_lo(key[1])
                    g(f"ds_read_b64 {lo if key[2] == 0 else hi}, v{V_KR} offset:{64*(63-key[1]) + 8*key[2]}"); q.append(("k", key[1]))
            elif k == "xw":
                t = op[1]
                gap = len(g.L) - lastacc[t]
                if gap < 8: g(f"s_nop {8 - gap - 1}")
                room(1)
                g(f"ds_write_b128 v{V_XW}, {vq(V_ACC+4*t)} offset:{8192*(t&1)}"); q.append(("x", t))
            elif k == "stv":
                t = op[1]
                g(f"s_waitcnt vmcnt({2 if t == 0 else 0})")
                L, Wr = stage_txt(2, V_U2, V_PT) if t == 0 else stage_txt(3, 0, V_PT)
                for x in L: g(x)
            elif k == "stw":
                t, c = op[1], op[2]
                L, Wr = stage_txt(2, V_U2, V_PT) if t == 0 else stage_txt(3, 0, V_PT)
                room(1); g(Wr[c]); q.append(("x", t))
            elif k == "stage":
                t = op[1]
                g(f"s_waitcnt vmcnt({2 if t == 2 else 0})")
                L, Wr = stage_txt(2, V_U2, V_PT) if t == 2 else stage_txt(3, 0, V_PT)
                for x in L: g(x)
                room(4)
                for x in Wr:
                    g(x); q.append(("x", t - 2))
            elif k == "rdout":
                t = op[1]
                for c in range(4): emit(("xr", t, c))
                for c in range(3): emit(("xa", t, c))
                emit(("st", t))
            elif k == "bar":
                need({("x", op[1])}); g("s_barrier")
            elif k == "xr":
                t, c = op[1], op[2]; room(1)
                g(f"ds_read2st64_b32 {vp(V_XO+2*c)}, v{V_XR} offset0:{8*c+32*(t&1)} offset1:{8*c+4+32*(t&1)}"); q.append(("y", t))
            elif k == "xa":
                t, c = op[1], op[2]
                if c == 0:
                    need({("y", t)})
                    g(f"v_add_f32 v{V_XO}, v{V_XO}, v{V_XO+1}\nv_add_f32 v{V_XO+2}, v{V_XO+2}, v{V_XO+3}")
                elif c == 1:
                    g(f"v_add_f32 v{V_XO+4}, v{V_XO+4}, v{V_XO+5}\nv_add_f32 v{V_XO+6}, v{V_XO+6}, v{V_XO+7}")
                else:
                    g(f"v_cvt_pk_bf16_f32 v{V_XO}, v{V_XO}, v{V_XO+2}\nv_cvt_pk_bf16_f32 v{V_XO+1}, v{V_XO+4}, v{V_XO+6}")
            elif k == "st":
                t = op[1]
                g(f"global_store_dwordx2 v{V_OG}, {vp(V_XO)}, {sp(S_OT+2*(t>>1))}")
                if 'nocs' not in OPT or t == 3 - (1 - role): stamp_at(10)
        order = {"xw": 0, "stv": 1, "stw": 2, "bar": 3, "rdout": 3.5, "stage": 3.7, "xr": 4, "rd": 5, "xa": 6, "st": 7}
        GRP = env('GRP', 1)
        PM = env('PAM', -1) if role == 0 else env('PBM', -1)
        PO = env('PAO', -1) if role == 0 else env('PBO', -1)
        if PO >= 0: g(f"s_setprio {PO}")
        for op in sorted(gaps[-1], key=lambda o: 0 if o[0] == 'rd' else 1): emit(op)
        pending = []
        for i, j in enumerate(jobs):
            first_in_grp = (i % GRP == 0)
            last_in_grp = (i % GRP == GRP - 1) or i == N - 1
            if first_in_grp:
                alltags = set()
                for jj in jobs[i:i + GRP]:
                    if jj[0] == "m": alltags.add(("k", jj[2]))
                    if jj[3] > 16: alltags.add(("w", jj[3]))
                for op in list(pending):
                    pass
                need(alltags)
                if PM >= 0: g(f"s_setprio {PM}")
            tags = set()
            if j[0] == "m": tags.add(("k", j[2]))
            if j[3] > 16: tags.add(("w", j[3]))
            for tg in tags: assert tg in q, (p, i, j, tg)
            need(tags)
            t = j[1]; acc = vq(V_ACC + 4*t)
            cin = acc if t in inited else "0"
            inited.add(t)
            A = kreg(j[2]) if j[0] == "m" else vq(V_DF)
            g(f"v_mfma_f32_16x16x32_bf16 {acc}, {A}, {wreg(j[3])}, {cin}")
            lastacc[t] = len(g.L)
            if 'convprof' in OPT and (i + 1) % 8 == 0: stamp_raw((i + 1) // 8)
            ops = gaps[i]
            if i < N - 1: ops = sorted(ops, key=lambda o: order[o[0]])
            else:
                ops = sorted(ops, key=lambda o: (orig.get(o, N - 1), order[o[0]]))
            pending += ops
            if last_in_grp:
                if PM >= 0: g(f"s_setprio {PO}")
                for op in pending: emit(op)
                pending = []

    g(f"""
v_and_b32 v{V_T0}, 15, v{V_LANE}
s_lshl_b32 s{S_T0}, s{S_IDX}, 6
s_lshl_b32 s{S_T2}, s{S_C}, 4
s_add_u32 s{S_T0}, s{S_T0}, s{S_T2}
v_add_u32 v{V_T2}, s{S_T0}, v{V_T0}
v_lshlrev_b32 v{V_T2}, 10, v{V_T2}
s_lshl_b32 s{S_T0}, s{S_XCD}, 7
v_add_u32 v{V_T2}, s{S_T0}, v{V_T2}
global_load_dword v{V_UST+7}, v{V_T2}, {sp(P_U)}
v_lshlrev_b32 v{V_TW}, 3, v{V_LANE}
v_add_u32 v{V_TW}, s{S_WB}, v{V_TW}
s_mov_b32 s{S_LC}, 0x3fb8aa3b
s_mov_b32 s{S_LC+1}, 0x3e22f983
""")
    for x in kr_lines() + ur_lines(): g(x)
    g(f"""
v_and_b32 v{V_T0}, 31, v{V_LANE}
v_lshrrev_b32 v{V_T1}, 5, v{V_LANE}
v_lshlrev_b32 v{V_T1}, 4, v{V_T1}
v_add_u32 v{V_T1}, s{S_WB}, v{V_T1}
v_min_u32 v{V_T2}, 24, v{V_T0}
v_mul_u32_u24 v{V_T2}, {RS}, v{V_T2}
v_add_u32 v{V_AR}, v{V_T1}, v{V_T2}
v_mul_u32_u24 v{V_T2}, {RS}, v{V_T0}
v_add_u32 v{V_BR}, v{V_T1}, v{V_T2}
v_add_u32 v{V_BR}, {NA*RS}, v{V_BR}
v_lshlrev_b32 v{V_T0}, 4, v{V_LANE}
s_add_u32 s{S_T0}, s{S_WB}, 1008
v_sub_u32 v{V_KW}, s{S_T0}, v{V_T0}
v_add_u32 v{V_SP}, s{S_WB}, v{V_T0}
s_mov_b32 s{S_ODD}, 0xaaaaaaaa
s_mov_b32 s{S_ODD+1}, 0xaaaaaaaa
s_mov_b64 s[{S_L0}:{S_L0+1}], 1
""")
    for x in x_lines(0) + ot_lines([0, 2]): g(x)
    g(f"""
v_lshrrev_b32 v{V_T1}, 4, v{V_LANE}
v_mul_u32_u24 v{V_T1}, {UCH}, v{V_T1}
v_and_b32 v{V_T0}, 15, v{V_LANE}
v_lshl_add_u32 v{V_T1}, v{V_T0}, 4, v{V_T1}
s_mul_i32 s{S_T0}, s{S_C}, {UH}
s_add_u32 s{S_T0}, s{S_T0}, {UB}
v_add_u32 v{V_T1}, s{S_T0}, v{V_T1}
v_mov_b32 v{V_PT}, 0
v_mov_b32 v{V_PT+1}, 0
v_mov_b32 v{V_PT+2}, 0
v_mov_b32 v{V_PT+3}, 0
s_mov_b32 exec_lo, 0x7fff7fff
s_mov_b32 exec_hi, 0x7fff7fff
ds_write_b128 v{V_T1}, {vq(V_PT)}
s_mov_b64 exec, -1
""")
    dt_code(True)
    g("s_waitcnt vmcnt(3)")
    stamp_at(2)
    for M in (0, 1):
        unpack(MB(M)+R_AL, V_PAR, M); unpack(MB(M)+R_AL+1, V_PAR+1, M)
    both(lambda b: g(f"v_pk_mul_f32 {vp(b+R_AL)}, {vp(b+R_AL)}, {vp(V_DT)}"))
    direct(R_Z8, R_AL)
    g(f"v_mov_b32 v{V_DW}, 0x00003f80\nv_mov_b32 v{V_DW+1}, 0x00003f80")
    g(f"ds_write_b64 v{V_TW}, {vp(V_DW)} offset:{NA*RS}")
    wcount[0] = 1
    twrite(R_Z8, [NA+1])
    both(lambda b: cmul(b+R_Y, b+R_Z8, b+R_Z8, b+R_T))
    twrite(R_Y, [NA+2])
    for j in range(3, 32):
        both(lambda b: cmul(b+R_Y, b+R_Y, b+R_Z8, b+R_T))
        twrite(R_Y, [NA+j])
    for kb in range(16):
        g(f"ds_read_b128 {aq(4*kb)}, v{V_BR} offset:{32*kb}")
        if kb == 8: g("s_waitcnt lgkmcnt(4)")
    stamp_at(3)
    g("s_waitcnt vmcnt(0) lgkmcnt(0)\ns_barrier")
    pA = 1
    winsA = [-15 + 2*i for i in range(16)]
    q = []
    NPF = env('NPF', 7)
    def rdA(kb):
        g(f"ds_read_b128 {vq(V_AOP + 4*(kb % 8))}, v{V_AR} offset:{32*kb}"); q.append(("A", kb))
    def rdW(W):
        g(f"ds_read_b128 {aq(win_areg(W, pA))}, v{V_UR} offset:{16*(W+15)}"); q.append(("W", W))
    fill = []
    for kb in range(NPF): rdA(kb)
    for kb in range(16):
        last = max(i for i, t in enumerate(q) if t == ("A", kb))
        n_after = len(q) - 1 - last
        g(f"s_waitcnt lgkmcnt({min(n_after, 15)})")
        cin = f"v[{V_KD}:{V_KD+15}]" if kb else "0"
        g(f"v_mfma_f32_32x32x16_bf16 v[{V_KD}:{V_KD+15}], {vq(V_AOP+4*(kb%8))}, {aq(4*kb)}, {cin}")
        if kb + NPF < 16: rdA(kb + NPF)
        if kb >= 4 or True:
            pass
    g("s_barrier")
    for i, W in enumerate(winsA):
        rdW(W)
        if i == 11: g("s_waitcnt lgkmcnt(8)")
    stamp_at(4)
    D = V_KD
    S0, S1, S2, S8, S10, S11, T10, T11 = [V_S + i for i in range(8)]
    def shift(dst, cur, nxt):
        g(f"v_mov_b32_dpp v{dst}, v{nxt} wave_rol:1 row_mask:0xf bank_mask:0xf")
        g(f"v_mov_b32_dpp v{dst}, v{cur} wave_shl:1 row_mask:0xf bank_mask:0xf")
    def val(p, beta):
        if p == 0: return D+beta if beta <= 7 else [S0, S1, S2][beta-8]
        if p == 1: return D+8 if beta <= 2 else (D+9 if beta <= 5 else S8)
        v, S, T = (D+10, S10, T10) if p == 2 else (D+11, S11, T11)
        return v if beta <= 3 else (T if beta == 4 else S)
    def epi(m):
        shift(S0, D+0, D+8)
        if m == 1:
            shift(S1, D+1, D+8); shift(S2, D+2, D+8)
        shift(S8, D+8, D+10); shift(S10, D+10, D+11); shift(S11, D+11, D+12)
        g(f"v_cndmask_b32 v{T10}, v{D+10}, v{S10}, {sp(S_ODD)}")
        g(f"v_cndmask_b32 v{T11}, v{D+11}, v{S11}, {sp(S_ODD)}")
        n = 0
        for p in range(4):
            for e in (0, 1):
                rho = 2*m + e
                c = V_CH + 4 * (n % 4); n += 1
                for d in range(4):
                    g(f"v_cvt_pk_bf16_f32 v{c+d}, v{val(p, rho+7-2*d)}, v{val(p, rho+6-2*d)}")
                g(f"ds_write_b128 v{V_KW}, {vq(c)} offset:{e*CP1 + 1024*(3-p)}")
        g(f"s_mov_b64 exec, 15")
        g(f"v_mov_b32 v{V_S+2}, 0\nv_mov_b32 v{V_S+3}, 0\nv_mov_b32 v{V_S+6}, 0\nv_mov_b32 v{V_S+7}, 0")
        for e in (0, 1):
            rho = 2*m + e
            b_ = V_S + 4*e
            def kv(i): return f"v{D+i}" if i >= 0 else "0"
            if rho == 0:
                g(f"v_mov_b32 v{b_}, 0\nv_mov_b32 v{b_+1}, 0")
            else:
                g(f"v_cvt_pk_bf16_f32 v{b_}, {kv(rho-1)}, {kv(rho-2)}")
                g(f"v_cvt_pk_bf16_f32 v{b_+1}, {kv(rho-3)}, {kv(rho-4)}")
                g(f"v_cndmask_b32 v{b_}, 0, v{b_}, {sp(S_L0)}")
                g(f"v_cndmask_b32 v{b_+1}, 0, v{b_+1}, {sp(S_L0)}")
            g(f"ds_write_b128 v{V_SP}, {vq(b_)} offset:{e*CP1+4096}")
        g(f"s_mov_b64 exec, -1")
    g(f"s_cmp_eq_u32 s{S_M}, 0\ns_cbranch_scc0 L_epi1")
    epi(0)
    g("s_branch L_epi_done\nL_epi1:")
    epi(1)
    g("L_epi_done:")
    stamp_at(5)
    g("s_waitcnt lgkmcnt(0)\ns_barrier")
    stamp_at(6)
    conv(1, 0, [])
    g("s_branch L_fin" if stamps else "s_endpgm")
    g("L_roleB:")
    g("L_pgB:\ns_cbranch_execz L_back")
    for t in (1, 2, 3):
        g(f"s_add_u32 s{S_UT+2*t}, s{P_U}, {t*0x80000}\ns_addc_u32 s{S_UT+2*t+1}, s{P_U+1}, 0")
    uload(P_U, 0); uload(S_UT+2, 1)
    g(f"s_mov_b32 s{S_C256}, 0x43800000\ns_mov_b32 s{S_C256+1}, 0x43800000")
    for x in ot_lines([1, 3]): g(x)
    g(f"""
v_and_b32 v{V_T0}, 1, v{V_LANE}
v_bfe_u32 v{V_T1}, v{V_LANE}, 1, 3
v_lshlrev_b32 v{V_T1}, 2, v{V_T1}
v_xor_b32 v{V_PT+1}, 1, v{V_T0}
v_mul_u32_u24 v{V_PT+1}, 3, v{V_PT+1}
v_add_u32 v{V_PT+2}, 1, v{V_T0}
s_cmp_eq_u32 s{S_M}, 0
s_cselect_b64 vcc, -1, 0
v_cndmask_b32 v{V_PT+1}, v{V_PT+2}, v{V_PT+1}, vcc
v_add_u32 v{V_T1}, v{V_T1}, v{V_PT+1}
v_lshrrev_b32 v{V_T2}, 4, v{V_LANE}
v_lshlrev_b32 v{V_T2}, 3, v{V_T2}
v_sub_u32 v{V_DF}, v{V_T1}, v{V_T2}
""")
    dt_code(False)
    g(f"""
s_lshl_b32 s{S_T0}, s{S_C}, 4
s_lshr_b64 {sp(S_DSK)}, {sp(S_DSK)}, s{S_T0}
s_and_b32 s{S_DSK}, s{S_DSK}, 0xffff
v_and_b32 v{V_T0}, 1, v{V_DF}
v_lshlrev_b32 v{V_T0}, 4, v{V_T0}
v_mov_b32 v{V_T1}, s{S_DSK}
v_lshlrev_b32 v{V_T1}, v{V_T0}, v{V_T1}
v_ashrrev_i32 v{V_T2}, 1, v{V_DF}
""")
    for d in range(4):
        g(f"v_cmp_eq_u32 vcc, {d}, v{V_T2}\ns_nop 1\nv_cndmask_b32 v{V_DF+d}, 0, v{V_T1}, vcc")
    g("s_waitcnt vmcnt(4)")
    stamp_at(2)
    for M in (0, 1):
        unpack(MB(M)+R_AL, V_PAR, M); unpack(MB(M)+R_AL+1, V_PAR+1, M)
        unpack(MB(M)+R_B, V_PAR+2, M); unpack(MB(M)+R_B+1, V_PAR+3, M)
        unpack(MB(M)+R_CC, V_PAR+4, M); unpack(MB(M)+R_CC+1, V_PAR+5, M)
    both(lambda b: g(f"v_pk_mul_f32 {vp(b+R_AL)}, {vp(b+R_AL)}, {vp(V_DT)}"))
    both(lambda b: cmul(b+R_C, b+R_CC, b+R_B, b+R_T))
    both(lambda b: g(f"v_pk_mul_f32 {vp(b+R_C)}, {vp(b+R_C)}, {vp(V_DT+2)} neg_hi:[1,0]"))
    direct(R_Z1, R_AL)
    both(lambda b: g(f"v_pk_mul_f32 {vp(b+R_T)}, {vp(b+R_AL)}, {sp(S_C256)}"))
    direct(R_Z256, R_T)
    rowpos = {0:[0],1:[1],2:[2],3:[3],256:[4,5],258:[6],260:[7,12,13],4:[8],5:[9],6:[10],7:[11],262:[14],264:[15],
              512:[16],516:[17],1024:[18],1536:[19],768:[20],772:[21],1280:[22],1792:[23],2048:[24]}
    wcount[0] = 0
    twrite(R_C, rowpos[0])
    both(lambda b: cmul(b+R_Z2, b+R_Z1, b+R_Z1, b+R_T))
    both(lambda b: cmul(b+R_Z4, b+R_Z2, b+R_Z2, b+R_T))
    prev = R_C
    for r in range(1, 8):
        dst = {2:R_X2, 4:R_X4, 6:R_X6}.get(r, R_X)
        both(lambda b: cmul(b+dst, b+prev, b+R_Z1, b+R_T, conj=True))
        twrite(dst, rowpos[r])
        prev = dst
    uload_to(S_UT+4, V_U2)
    both(lambda b: cmul(b+R_E, b+R_C, b+R_Z256, b+R_T, conj=True))
    twrite(R_E, rowpos[256])
    for src, r in ((R_X2, 258), (R_X6, 262), (R_X4, 260)):
        both(lambda b: cmul(b+R_X, b+src, b+R_Z256, b+R_T, conj=True))
        twrite(R_X, rowpos[r])
    both(lambda b: cmul(b+R_X, b+R_X, b+R_Z4, b+R_T, conj=True))
    twrite(R_X, rowpos[264])
    for k in range(2, 9):
        both(lambda b: cmul(b+R_E, b+R_E, b+R_Z256, b+R_T, conj=True))
        twrite(R_E, rowpos[256*k])
        if k in (2, 3):
            both(lambda b: cmul(b+R_X, b+R_E, b+R_Z4, b+R_T, conj=True))
            twrite(R_X, rowpos[256*k+4])
    stamp_at(3)
    g("s_waitcnt lgkmcnt(0)\ns_barrier")
    g("s_waitcnt vmcnt(2)")
    stage(0, 0, V_PT); stage(1, 1, V_PT)
    uload(S_UT+6, 0)
    g("s_waitcnt lgkmcnt(0)\ns_barrier")
    stamp_at(4)
    for i in range(16):
        W = -14 + 2*i
        g(f"ds_read_b128 {aq(win_areg(W, 0))}, v{V_UR} offset:{16*(W+15)}")
        if i == 8: g("s_waitcnt lgkmcnt(4)")
    stamp_at(5)
    g("s_waitcnt lgkmcnt(0)\ns_barrier")
    stamp_at(6)
    conv(0, 1, [])
    g("L_fin:")
    if stamps:
        g("s_waitcnt vmcnt(0)")
        stamp_at(11)
        g("s_memrealtime s[74:75]")
        g("s_waitcnt lgkmcnt(0)")
        g("s_load_dwordx2 s[14:15], s[0:1], 80")
        g("s_load_dwordx2 s[12:13], s[0:1], 88")
        g("s_waitcnt lgkmcnt(0)")
        g(f"s_lshl_b32 s11, s2, 3\ns_add_u32 s11, s11, s{S_W}\ns_lshl_b32 s11, s11, 7")
        g("s_add_u32 s12, s12, s11\ns_addc_u32 s13, s13, 0")
        g("s_mov_b64 exec, 1")
        g("v_mov_b32 v13, 0")
        for i in range(12):
            if i == 0: g("v_mov_b32 v14, s76")
            else: g(f"s_sub_u32 s66, s{76+2*i}, s76\nv_mov_b32 v14, s66")
            g(f"global_store_dword v13, v14, s[12:13] offset:{4*i}")
            g(f"s_cmp_eq_u32 s11, 0\ns_cbranch_scc0 L_nd{i}\nglobal_store_dword v13, v14, s[14:15] offset:{4*i}\nL_nd{i}:")
        g("s_sub_u32 s66, s98, s76\nv_mov_b32 v14, s66\nglobal_atomic_umax v13, v14, s[14:15] offset:48")
        g("s_sub_u32 s66, s80, s76\nv_mov_b32 v14, s66\nglobal_atomic_umax v13, v14, s[14:15] offset:52")
        g("v_mov_b32 v14, s74\nglobal_atomic_umax v13, v14, s[14:15] offset:56")
        g("s_not_b32 s66, s72\nv_mov_b32 v14, s66\nglobal_atomic_umax v13, v14, s[14:15] offset:60")
        g("v_mov_b32 v14, s72\nglobal_store_dword v13, v14, s[12:13] offset:120")
        g("v_mov_b32 v14, s74\nglobal_store_dword v13, v14, s[12:13] offset:124")
        g("s_waitcnt vmcnt(0)")
    g("L_end:\ns_endpgm")
    return g

HEADER = """; Kernarg layout (96 bytes): u, A_re, A_im, B_re, B_im, C_re, C_im, log_dt, Dskip, out, debug, ws (8 bytes each)
; @launch grid=(256,1,1) block=(512,1,1) lds=%d
.amdgcn_target "amdgcn-amd-amdhsa--gfx950"
.text
.globl standalone__ssm_conv_s4__prompt_kernel
.p2align 12
.fill 0x340, 4, 0xBF800000
.p2align 8
.type standalone__ssm_conv_s4__prompt_kernel,@function
standalone__ssm_conv_s4__prompt_kernel:
""" % LDS_TOTAL
def footer(ns): return """.section .rodata,"a"
.p2align 6
.amdhsa_kernel standalone__ssm_conv_s4__prompt_kernel
  .amdhsa_next_free_vgpr 256
  .amdhsa_next_free_sgpr %d
  .amdhsa_accum_offset 128
  .amdhsa_group_segment_fixed_size 0
  .amdhsa_kernarg_size 96
  .amdhsa_user_sgpr_count 2
  .amdhsa_user_sgpr_kernarg_segment_ptr 1
  .amdhsa_system_sgpr_workgroup_id_x 1
.end_amdhsa_kernel
""" % ns
def assemble_sizes(text):
    import subprocess, re, tempfile
    sys.path.insert(0, "cdna_kernels")
    open("_p.s", "w").write(text)
    r = subprocess.run(["clang", "-x", "assembler", "-target", "amdgcn-amd-amdhsa", "-mcpu=gfx950", "-c", "_p.s", "-o", "_p.o"], capture_output=True, text=True)
    assert r.returncode == 0, r.stderr
    d = subprocess.run(["llvm-objdump", "-d", "--mcpu=gfx950", "_p.o"], capture_output=True, text=True).stdout
    addrs = []
    started = False
    for ln in d.split("\n"):
        if "<standalone__ssm_conv_s4__prompt_kernel>:" in ln: started = True; continue
        if not started: continue
        m = re.search(r"// ([0-9A-F]{12}):", ln)
        if m: addrs.append(int(m.group(1), 16))
    return addrs

if __name__ == "__main__":
    out = sys.argv[1]
    st = len(sys.argv) > 2 and sys.argv[2] == "stamps"
    g = gen(st)
    def isinstr(l): return not (l.endswith(":") or l.startswith(".") or l.startswith(";"))
    for pg in (1, 2):
        tmp = G(); tmp.L = list(g.L)
        have = [l for l in tmp.L if l.startswith("L_pg") and l.endswith(":")]
        for k in (1, 2):
            if f"L_pg{k}:" not in have: tmp.L.append(f"L_pg{k}:"); tmp.L.append("s_endpgm")
        addrs = assemble_sizes(HEADER + tmp.text() + footer(102 if st else 72))
        base = addrs[0]
        idx = [i for i, l in enumerate(g.L) if isinstr(l)]
        pos = None
        for n, i in enumerate(idx):
            if addrs[n] - base >= pg * 4096:
                pos = i; break
        if pos is None:
            g.L += [f"L_pg{pg}:", "s_cbranch_execz L_back", "s_endpgm"]
        else:
            g.L[pos:pos] = [f"L_pg{pg}:", "s_cbranch_execz L_back"]
    open(out, "w").write(HEADER + g.text() + footer(102 if st else 72))
    print("LDS", LDS_TOTAL, "lines", len(g.L))
```

```python
import sys, os
OPT = os.environ.get('OPT', '').split(',')
def env(n, d): return int(os.environ.get(n, d))

class G:
    def __init__(self): self.L = []
    def __call__(self, s):
        for ln in s.strip("\n").split("\n"):
            ln = ln.strip()
            if ln: self.L.append(ln)
    def text(self):
        out = []
        for l in self.L:
            out.append(l if (l.endswith(":") or l.startswith(".") or l.startswith(";")) else "    " + l)
        return "\n".join(out) + "\n"

def vp(i): return f"v[{i}:{i+1}]"
def vq(i): return f"v[{i}:{i+3}]"
def aq(i): return f"a[{i}:{i+3}]"
def sp(i): return f"s[{i}:{i+1}]"

RS = 528; NA = 25; WR = 30208
UB = 4 * WR; UCH = 5120; UH = 1280
XB = UB + 4 * UCH
LDS_TOTAL = XB + 16384
CP1 = 4224

S_W, S_XCD, S_IDX, S_M, S_D0, S_D, S_C, S_R = 3, 4, 5, 6, 7, 8, 9, 10
P_U, P_ARE, P_AIM, P_BRE, P_BIM, P_CRE, P_CIM, P_LDT = 16, 18, 20, 22, 24, 26, 28, 30
P_DSK, P_OUT = 32, 34
S_LDT, S_DSK = 36, 38
S_C256, S_LC = 42, 44
S_PLO, S_PHI = 46, 47
S_ODD = 48
S_L0 = 40
S_UT = 50
S_OT = 58
S_T0, S_T1, S_T2, S_T3 = 66, 67, 68, 69
S_WB = 70
S_D02 = 71

V_LANE = 1
V_TW, V_AR, V_BR, V_KW, V_KR, V_UR, V_US, V_UG, V_XW, V_XR, V_OG = 2, 3, 4, 5, 6, 7, 8, 9, 10, 11, 12
V_T0, V_T1, V_T2 = 13, 14, 15
V_UST = 16
V_DF = 24
V_DT = 28
V_ACC = 32
V_MB = 48
MSZ = 30
def MB(M): return V_MB + MSZ * M
R_AL, R_C, R_Z1, R_Z2, R_Z4, R_Z256, R_T, R_X, R_E, R_X2, R_X4, R_X6, R_B, R_CC, R_M = [2*i for i in range(15)]
R_Z8, R_Y = R_Z1, R_X
V_DW = 112
V_KD = 112
V_AOP = 48
V_S = 80
V_CH = 88
V_RK = 88
V_RW = 48
V_XO = 104
V_PT = 120
V_PO = 123
V_U2 = 124
V_SP = 24
V_PAR = 106

def gen(stamps=False):
    g = G()
    def stamp_raw(i):
        if stamps: g(f"s_memtime s[{76+2*i}:{77+2*i}]")
    def stamp_at(i):
        if 'convprof' in OPT:
            if i == 6: stamp_raw(0)
            if i == 11: stamp_raw(11)
            return
        stamp_raw(i)
    def common_early():
        g(f"""
v_lshrrev_b32 v{V_UG}, 2, v{V_LANE}
v_lshlrev_b32 v{V_UG}, 5, v{V_UG}
v_and_b32 v{V_T2}, 3, v{V_LANE}
v_lshl_add_u32 v{V_UG}, v{V_T2}, 1, v{V_UG}
s_lshl_b32 s{S_T0}, s{S_C}, 3
v_add_u32 v{V_UG}, s{S_T0}, v{V_UG}
v_lshlrev_b32 v{V_UG}, 10, v{V_UG}
v_add_u32 v{V_UG}, s{S_D02}, v{V_UG}
v_lshlrev_b32 v{V_TW}, 3, v{V_LANE}
v_add_u32 v{V_TW}, s{S_WB}, v{V_TW}
s_mov_b32 s{S_LC}, 0x3fb8aa3b
s_mov_b32 s{S_LC+1}, 0x3e22f983
""")
    def unpack(dst, src, M):
        if M == 0: g(f"v_lshlrev_b32 v{dst}, 16, v{src}")
        else: g(f"v_and_b32 v{dst}, 0xffff0000, v{src}")

    def uload(base, slot):
        g(f"global_load_dwordx2 {vp(V_UST+4*slot)}, v{V_UG}, {sp(base)}")
        g(f"global_load_dwordx2 {vp(V_UST+4*slot+2)}, v{V_UG}, {sp(base)} offset:1024")
    def uload_to(base, reg):
        g(f"global_load_dwordx2 {vp(reg)}, v{V_UG}, {sp(base)}")
        g(f"global_load_dwordx2 {vp(reg+2)}, v{V_UG}, {sp(base)} offset:1024")
    def stage_txt(t, slot, tmp4):
        b = V_UST + 4*slot if slot < 8 else slot
        L = [f"v_perm_b32 v{V_T0}, v{b+2}, v{b}, s{S_PLO}",
             f"v_perm_b32 v{V_T1}, v{b+2}, v{b}, s{S_PHI}",
             f"v_perm_b32 v{V_T2}, v{b+3}, v{b+1}, s{S_PLO}",
             f"v_perm_b32 v{tmp4}, v{b+3}, v{b+1}, s{S_PHI}"]
        W = [f"ds_write_b32 v{V_US}, v{r} offset:{UCH*c + 256*t}" for c, r in enumerate((V_T0, V_T1, V_T2, tmp4))]
        return L, W
    def stage(t, slot, tmp4):
        L, W = stage_txt(t, slot, tmp4)
        for x in L + W: g(x)
    def us_addr():
        g(f"""
s_mul_i32 s{S_T0}, s{S_C}, {UH}
s_add_u32 s{S_T0}, s{S_T0}, {UB + 240}
v_lshlrev_b32 v{V_US}, 2, v{V_LANE}
v_add_u32 v{V_US}, s{S_T0}, v{V_US}
s_mov_b32 s{S_PLO}, 0x05040100
s_mov_b32 s{S_PHI}, 0x07060302
""")
    def dt_code(scale8):
        g(f"""
s_waitcnt lgkmcnt(0)
s_lshl_b32 s{S_T0}, s{S_C}, 4
s_lshr_b64 {sp(S_LDT)}, {sp(S_LDT)}, s{S_T0}
s_lshl_b32 s{S_LDT}, s{S_LDT}, 16
v_mov_b32 v{V_T0}, s{S_LC}
v_mul_f32 v{V_T1}, s{S_LDT}, v{V_T0}
v_fma_f32 v{V_T2}, s{S_LDT}, v{V_T0}, -v{V_T1}
v_mov_b32 v{V_T0}, 0x32a57060
v_fma_f32 v{V_T2}, s{S_LDT}, v{V_T0}, v{V_T2}
v_exp_f32 v{V_T1}, v{V_T1}
v_mul_f32 v{V_T2}, 0x3f317218, v{V_T2}
v_fma_f32 v{V_T1}, v{V_T1}, v{V_T2}, v{V_T1}
v_cvt_pk_bf16_f32 v{V_T1}, v{V_T1}, v{V_T1}
v_lshlrev_b32 v{V_DT+2}, 16, v{V_T1}
""")
        if scale8:
            g(f"v_mul_f32 v{V_DT+2}, 0x41000000, v{V_DT+2}")
        g(f"v_mov_b32 v{V_DT+3}, v{V_DT+2}")
        g(f"v_pk_mul_f32 {vp(V_DT)}, {vp(V_DT+2)}, {sp(S_LC)}")
    def cmul(dst, a, bb, tmp, conj=False):
        g(f"v_pk_mul_f32 {vp(tmp)}, {vp(a)}, {vp(bb)} op_sel_hi:[1,0]")
        neg = "neg_hi:[0,1,0]" if conj else "neg_lo:[0,1,0]"
        g(f"v_pk_fma_f32 {vp(dst)}, {vp(a)}, {vp(bb)}, {vp(tmp)} op_sel:[1,1,0] op_sel_hi:[0,1,1] {neg}")
    def both(f):
        for M in (0, 1): f(MB(M))
    def direct(dst, arg):
        both(lambda b: g(f"v_exp_f32 v{b+R_M}, v{b+arg}"))
        both(lambda b: g(f"v_fract_f32 v{b+R_M+1}, v{b+arg+1}"))
        both(lambda b: g(f"v_cos_f32 v{b+dst}, v{b+R_M+1}"))
        both(lambda b: g(f"v_sin_f32 v{b+dst+1}, v{b+R_M+1}"))
        g("s_nop 0")
        both(lambda b: g(f"v_pk_mul_f32 {vp(b+dst)}, {vp(b+dst)}, {vp(b+R_M)} op_sel_hi:[1,0]"))
    wcount = [0]
    def twrite(src_off, positions):
        p = V_DW + 2 * (wcount[0] % 4); wcount[0] += 1
        for M in (0, 1):
            b = MB(M)
            g(f"v_cvt_pk_bf16_f32 v{p+M}, v{b+src_off}, v{b+src_off+1}")
        for pos in positions:
            g(f"ds_write_b64 v{V_TW}, {vp(p)} offset:{pos*RS}")
    def kr_lines():
        return f"""
v_and_b32 v{V_T0}, 1, v{V_LANE}
v_bfe_u32 v{V_T1}, v{V_LANE}, 1, 3
s_xor_b32 s{S_T0}, s{S_M}, 1
v_xor_b32 v{V_T2}, 1, v{V_T0}
v_and_b32 v{V_T2}, s{S_T0}, v{V_T2}
v_add_u32 v{V_T2}, v{V_T1}, v{V_T2}
v_lshlrev_b32 v{V_T2}, 3, v{V_T2}
v_mul_u32_u24 v{V_KR}, {CP1}, v{V_T0}
v_sub_u32 v{V_KR}, v{V_KR}, v{V_T2}
v_lshrrev_b32 v{V_T2}, 4, v{V_LANE}
v_lshlrev_b32 v{V_T2}, 4, v{V_T2}
v_add_u32 v{V_KR}, v{V_KR}, v{V_T2}
s_add_u32 s{S_T0}, s{S_WB}, 64
v_add_u32 v{V_KR}, s{S_T0}, v{V_KR}
""".strip().split("\n")
    def ur_lines():
        return f"""
v_lshrrev_b32 v{V_T1}, 4, v{V_LANE}
v_mul_u32_u24 v{V_T1}, {UH}, v{V_T1}
v_and_b32 v{V_T0}, 15, v{V_LANE}
v_lshlrev_b32 v{V_T2}, 4, v{V_T0}
v_add_u32 v{V_UR}, v{V_T1}, v{V_T2}
s_mul_i32 s{S_T0}, s{S_C}, {UCH}
s_add_u32 s{S_T0}, s{S_T0}, {UB}
v_add_u32 v{V_UR}, s{S_T0}, v{V_UR}
""".strip().split("\n")
    def x_lines(role):
        return f"""
v_lshlrev_b32 v{V_T1}, 4, v{V_LANE}
s_lshl_b32 s{S_T0}, s{S_C}, 11
s_add_u32 s{S_T0}, s{S_T0}, {XB + 1024*role}
v_add_u32 v{V_XW}, s{S_T0}, v{V_T1}
v_and_b32 v{V_T0}, 7, v{V_LANE}
v_lshrrev_b32 v{V_T1}, 5, v{V_LANE}
v_lshl_add_u32 v{V_T0}, v{V_T1}, 3, v{V_T0}
v_bfe_u32 v{V_T1}, v{V_LANE}, 3, 2
v_lshlrev_b32 v{V_XR}, 4, v{V_T0}
v_lshl_add_u32 v{V_XR}, v{V_T1}, 2, v{V_XR}
s_lshl_b32 s{S_T0}, s{S_C}, 8
s_add_u32 s{S_T0}, s{S_T0}, {XB}
v_add_u32 v{V_XR}, s{S_T0}, v{V_XR}
v_lshlrev_b32 v{V_OG}, 5, v{V_T0}
v_lshrrev_b32 v{V_T2}, 1, v{V_T1}
v_lshl_add_u32 v{V_OG}, v{V_T2}, 2, v{V_OG}
v_and_b32 v{V_T1}, 1, v{V_T1}
v_xor_b32 v{V_T2}, 1, v{V_T1}
v_mul_u32_u24 v{V_T2}, 3, v{V_T2}
v_add_u32 v{V_T1}, 1, v{V_T1}
s_cmp_eq_u32 s{S_M}, 0
s_cselect_b64 vcc, -1, 0
v_cndmask_b32 v{V_T1}, v{V_T1}, v{V_T2}, vcc
v_add_u32 v{V_OG}, v{V_OG}, v{V_T1}
s_lshl_b32 s{S_T0}, s{S_C}, 3
v_add_u32 v{V_OG}, s{S_T0}, v{V_OG}
v_lshlrev_b32 v{V_OG}, 10, v{V_OG}
v_add_u32 v{V_OG}, s{S_D02}, v{V_OG}
""".strip().split("\n")
    def ot_lines(tiles):
        L = []
        for i, t in enumerate(tiles):
            L += [f"s_add_u32 s{S_OT+2*i}, s{P_OUT}, {t*0x80000}", f"s_addc_u32 s{S_OT+2*i+1}, s{P_OUT+1}, 0"]
        return L

    if stamps: g("s_memrealtime s[72:73]")
    stamp_at(0)
    g(f"""
s_cmp_ge_u32 s2, 256
s_cbranch_scc1 L_end
s_load_dwordx16 s[16:31], s[0:1], 0
s_load_dwordx4 s[32:35], s[0:1], 64
v_lshrrev_b32 v{V_T0}, 6, v0
v_and_b32 v{V_LANE}, 63, v0
v_readfirstlane_b32 s{S_W}, v{V_T0}
s_and_b32 s{S_XCD}, s2, 7
s_lshr_b32 s{S_IDX}, s2, 3
s_and_b32 s{S_M}, s{S_IDX}, 1
s_lshr_b32 s{S_T0}, s{S_IDX}, 1
s_lshl_b32 s{S_T0}, s{S_T0}, 2
s_lshl_b32 s{S_D0}, s{S_XCD}, 6
s_add_u32 s{S_D0}, s{S_D0}, s{S_T0}
s_and_b32 s{S_C}, s{S_W}, 3
s_lshr_b32 s{S_R}, s{S_W}, 2
s_add_u32 s{S_D}, s{S_D0}, s{S_C}
s_lshl_b32 s{S_D02}, s{S_D0}, 1
s_mul_i32 s{S_WB}, s{S_C}, {WR}
s_lshl_b32 s{S_T0}, s{S_D}, 8
v_lshlrev_b32 v{V_PO}, 2, v{V_LANE}
v_add_u32 v{V_PO}, s{S_T0}, v{V_PO}
v_mov_b32 v{V_UG}, 0
v_mov_b32 v{V_OG}, 0
s_cmp_eq_u32 s{S_R}, 0
s_cbranch_scc0 L_Bearly
s_mov_b64 exec, 0
s_cmp_eq_u32 s{S_W}, 0
s_cbranch_scc1 L_pg1
s_cmp_eq_u32 s{S_W}, 1
s_cbranch_scc1 L_pg2
s_cmp_eq_u32 s{S_W}, 2
s_cbranch_scc1 L_pgB
s_branch L_back
L_Bearly:
""")
    common_early(); us_addr()
    for x in kr_lines() + ur_lines() + x_lines(1): g(x)
    g(f"""
L_back:
s_mov_b64 exec, -1
s_cmp_eq_u32 s{S_R}, 0
s_waitcnt lgkmcnt(0)
""")
    stamp_at(1)
    g(f"global_load_dword v{V_PAR}, v{V_PO}, {sp(P_ARE)}")
    g(f"global_load_dword v{V_PAR+1}, v{V_PO}, {sp(P_AIM)}")
    g("s_cbranch_scc1 L_skipB")
    for i, p in enumerate([P_BRE, P_BIM, P_CRE, P_CIM]):
        g(f"global_load_dword v{V_PAR+2+i}, v{V_PO}, {sp(p)}")
    g(f"s_add_u32 s{P_DSK}, s{P_DSK}, s{S_D02}\ns_addc_u32 s{P_DSK+1}, s{P_DSK+1}, 0")
    g(f"s_load_dwordx2 {sp(S_DSK)}, {sp(P_DSK)}, 0")
    g("s_branch L_par_done")
    g("L_skipB:")
    g(f"v_mov_b32 v{V_T0}, 0")
    g(f"global_load_dword v{V_PAR+2}, v{V_T0}, {sp(P_U)}")
    g(f"global_load_dword v{V_PAR+3}, v{V_T0}, {sp(P_OUT)}")
    g("L_par_done:")
    g(f"s_add_u32 s{P_LDT}, s{P_LDT}, s{S_D02}\ns_addc_u32 s{P_LDT+1}, s{P_LDT+1}, 0")
    g(f"s_load_dwordx2 {sp(S_LDT)}, {sp(P_LDT)}, 0")
    g(f"s_cmp_eq_u32 s{S_R}, 0")
    g("s_barrier")
    g(f"s_cbranch_scc0 L_roleB")

    def win_areg(W, p): return 64 + 4 * ((W + 15 - (1 - p)) // 2)
    def conv(p, role, extra):
        par = lambda lo, hi: [x for x in range(lo, hi) if x % 2 == p]
        M_ = lambda t, sig: ("m", t, sig, 16*t - sig)
        D_ = lambda t: ("d", t, None, 16*t)
        jobs = []; done_at = {}
        for s_ in par(0, 16):
            jobs += [M_(0, s_), M_(1, s_)]
            if p == 0 and s_ == 0: jobs.append(D_(0))
        done_at[0] = max(i for i, j in enumerate(jobs) if j[1] == 0)
        for s_ in par(16, 32):
            jobs += [M_(1, s_), M_(2, s_)]
            if p == 0 and s_ == 16: jobs.append(D_(1))
        done_at[1] = max(i for i, j in enumerate(jobs) if j[1] == 1)
        for s_ in par(32, 48): jobs += [M_(2, s_), M_(3, s_)]
        for W in par(17, 33):
            jobs += [M_(2, 32 - W), M_(3, 48 - W)]
            if p == 0 and W == 32: jobs.append(D_(2))
        done_at[2] = max(i for i, j in enumerate(jobs) if j[1] == 2)
        a_ = par(48, 64); b_ = par(33, 49)
        for i in range(8):
            jobs.append(M_(3, a_[i])); jobs.append(M_(3, 48 - b_[i]))
        if p == 0: jobs.append(D_(3))
        done_at[3] = len(jobs) - 1
        N = len(jobs)
        def kreg(sig):
            if sig < 32: return aq(4 * (sig // 2))
            return vq(V_RK + 4 * (((sig - 32) // 2) % 4))
        def kreg_lo(sig):
            if sig < 32: return f"a[{4*(sig//2)}:{4*(sig//2)+1}]", f"a[{4*(sig//2)+2}:{4*(sig//2)+3}]"
            bb = V_RK + 4 * (((sig - 32) // 2) % 4)
            return vp(bb), vp(bb + 2)
        def wreg(W):
            if W <= 16: return aq(win_areg(W, p))
            return vq(V_RW + 4 * (((W - 17) // 2) % 4))
        gaps = {i: [] for i in range(-1, N)}
        nlds = {i: 0 for i in range(-1, N)}
        DA, DB, DR, DS = env('DA', 3), env('DB', 7), env('DR', 0), env('DS', 6)
        barpos = {}
        orig = {}
        def put(i, op, lds=False):
            orig[op] = i
            i = min(i, N - 1)
            gaps[i].append(op)
            if lds: nlds[i] += 1
            return i
        for t in range(4):
            j = done_at[t]
            put(j + DA, ("xw", t), True)
            bp = put(j + DB, ("bar", t))
            barpos[t] = bp
            if (t & 1) == role:
                if role == 1:
                    put(j + DB, ("rdout", t))
                else:
                    for k in range(4): put(bp + DR + k, ("xr", t, k), True)
                    put(bp + DR + DS, ("xa", t, 0)); put(bp + DR + DS + 1, ("xa", t, 1)); put(bp + DR + DS + 2, ("xa", t, 2)); put(bp + DR + DS + 3, ("st", t))
            if role == 1 and t == 0:
                put(j + DB, ("stage", 3))
        B2B = env('B2B', 12)
        if role == 1:
            put(B2B, ("b2b",)); put(B2B + env('ST2', 2), ("stage", 2))
        first = {}; last = {}
        for i, j in enumerate(jobs):
            keys = [("w", j[3])] + ([("k", j[2])] if j[0] == "m" else [])
            for k in keys:
                first.setdefault(k, i); last[k] = i
        reads = []
        for k, i in sorted(first.items(), key=lambda x: x[1]):
            if k[0] == "w":
                if k[1] <= 16:
                    if role == 0: continue
                    reads.append((i, -1, ("w", k[1]))); continue
                rel = barpos[0] if k[1] <= 32 else barpos[1]
                if k[1] - 8 >= 17: rel = max(rel, last[("w", k[1] - 8)])
                reads.append((i, rel, ("w", k[1])))
            else:
                rel = -1
                if role == 1 and k[1] >= 16: rel = B2B
                if k[1] >= 40: rel = max(rel, last[("k", k[1] - 8)])
                reads.append((i, rel, ("k", k[1], 0))); reads.append((i, rel, ("k", k[1], 1)))
        LMAX, LMIN, INIT = env('LMAX', 14), env('LMIN', 5), env('INIT', 10)
        pos = -1; ninit = 0
        for (d, rel, key) in reads:
            g0 = max(rel, d - LMAX, pos)
            if g0 <= -1 and ninit < INIT:
                i = -1; ninit += 1
            else:
                i = max(g0, 0)
                while nlds[i] >= 1 and i < d - LMIN: i += 1
                i = min(i, d - env('GRP', 1) - (d % env('GRP', 1)) if env('GRP', 1) > 1 else d - 1)
                i = max(i, rel)
            gaps[i].append(("rd", key)); nlds[i] += 1; pos = i
        q = []; st = {"waited": 0}
        def room(n):
            out = len(q) - st["waited"]
            if out + n > 15:
                keep = 15 - n
                g(f"s_waitcnt lgkmcnt({keep})"); st["waited"] = len(q) - keep
        def need(tags):
            lastq = -1
            for i, tg in enumerate(q):
                if tg in tags: lastq = i
            if lastq >= st["waited"]:
                g(f"s_waitcnt lgkmcnt({len(q)-1-lastq})"); st["waited"] = lastq + 1
        lastacc = {}; inited = set()
        def emit(op):
            k = op[0]
            if k == "rd":
                key = op[1]; room(1)
                if key[0] == "w":
                    g(f"ds_read_b128 {wreg(key[1])}, v{V_UR} offset:{16*(key[1]+15)}"); q.append(("w", key[1]))
                else:
                    lo, hi = kreg_lo(key[1])
                    g(f"ds_read_b64 {lo if key[2] == 0 else hi}, v{V_KR} offset:{64*(63-key[1]) + 8*key[2]}"); q.append(("k", key[1]))
            elif k == "xw":
                t = op[1]
                gap = len(g.L) - lastacc[t]
                if gap < 8: g(f"s_nop {8 - gap - 1}")
                room(1)
                g(f"ds_write_b128 v{V_XW}, {vq(V_ACC+4*t)} offset:{8192*(t&1)}"); q.append(("x", t))
            elif k == "stv":
                t = op[1]
                g(f"s_waitcnt vmcnt({2 if t == 0 else 0})")
                L, Wr = stage_txt(2, V_U2, V_PT) if t == 0 else stage_txt(3, 0, V_PT)
                for x in L: g(x)
            elif k == "stw":
                t, c = op[1], op[2]
                L, Wr = stage_txt(2, V_U2, V_PT) if t == 0 else stage_txt(3, 0, V_PT)
                room(1); g(Wr[c]); q.append(("x", t))
            elif k == "stage":
                t = op[1]
                g(f"s_waitcnt vmcnt({2 if t == 2 else 0})")
                L, Wr = stage_txt(2, V_U2, V_PT) if t == 2 else stage_txt(3, 0, V_PT)
                for x in L: g(x)
                room(4)
                for x in Wr:
                    g(x); q.append(("x", t - 2))
            elif k == "rdout":
                t = op[1]
                for c in range(4): emit(("xr", t, c))
                for c in range(3): emit(("xa", t, c))
                emit(("st", t))
            elif k == "b2b":
                g("s_barrier")
            elif k == "bar":
                need({("x", op[1])}); g("s_barrier")
            elif k == "xr":
                t, c = op[1], op[2]; room(1)
                g(f"ds_read2st64_b32 {vp(V_XO+2*c)}, v{V_XR} offset0:{8*c+32*(t&1)} offset1:{8*c+4+32*(t&1)}"); q.append(("y", t))
            elif k == "xa":
                t, c = op[1], op[2]
                if c == 0:
                    need({("y", t)})
                    g(f"v_add_f32 v{V_XO}, v{V_XO}, v{V_XO+1}\nv_add_f32 v{V_XO+2}, v{V_XO+2}, v{V_XO+3}")
                elif c == 1:
                    g(f"v_add_f32 v{V_XO+4}, v{V_XO+4}, v{V_XO+5}\nv_add_f32 v{V_XO+6}, v{V_XO+6}, v{V_XO+7}")
                else:
                    g(f"v_cvt_pk_bf16_f32 v{V_XO}, v{V_XO}, v{V_XO+2}\nv_cvt_pk_bf16_f32 v{V_XO+1}, v{V_XO+4}, v{V_XO+6}")
            elif k == "st":
                t = op[1]
                g(f"global_store_dwordx2 v{V_OG}, {vp(V_XO)}, {sp(S_OT+2*(t>>1))}")
                if 'nocs' not in OPT or t == 3 - (1 - role): stamp_at(10)
        order = {"xw": 0, "stv": 1, "stw": 2, "bar": 3, "b2b": 3, "rdout": 3.5, "stage": 3.7, "xr": 4, "rd": 5, "xa": 6, "st": 7}
        GRP = env('GRP', 1)
        PM = env('PAM', -1) if role == 0 else env('PBM', -1)
        PO = env('PAO', -1) if role == 0 else env('PBO', -1)
        if PO >= 0: g(f"s_setprio {PO}")
        for op in sorted(gaps[-1], key=lambda o: 0 if o[0] == 'rd' else 1): emit(op)
        pending = []
        for i, j in enumerate(jobs):
            first_in_grp = (i % GRP == 0)
            last_in_grp = (i % GRP == GRP - 1) or i == N - 1
            if first_in_grp:
                alltags = set()
                for jj in jobs[i:i + GRP]:
                    if jj[0] == "m": alltags.add(("k", jj[2]))
                    if jj[3] > 16 or role == 1: alltags.add(("w", jj[3]))
                for op in list(pending):
                    pass
                need(alltags)
                if PM >= 0: g(f"s_setprio {PM}")
            tags = set()
            if j[0] == "m": tags.add(("k", j[2]))
            if j[3] > 16 or role == 1: tags.add(("w", j[3]))
            for tg in tags: assert tg in q, (p, i, j, tg)
            need(tags)
            t = j[1]; acc = vq(V_ACC + 4*t)
            cin = acc if t in inited else "0"
            inited.add(t)
            A = kreg(j[2]) if j[0] == "m" else vq(V_DF)
            g(f"v_mfma_f32_16x16x32_bf16 {acc}, {A}, {wreg(j[3])}, {cin}")
            lastacc[t] = len(g.L)
            if 'convprof' in OPT and (i + 1) % 8 == 0: stamp_raw((i + 1) // 8)
            ops = gaps[i]
            if i < N - 1: ops = sorted(ops, key=lambda o: order[o[0]])
            else:
                ops = sorted(ops, key=lambda o: (orig.get(o, N - 1), order[o[0]]))
            pending += ops
            if last_in_grp:
                if PM >= 0: g(f"s_setprio {PO}")
                for op in pending: emit(op)
                pending = []

    g(f"""
v_and_b32 v{V_T0}, 15, v{V_LANE}
s_lshl_b32 s{S_T0}, s{S_IDX}, 6
s_lshl_b32 s{S_T2}, s{S_C}, 4
s_add_u32 s{S_T0}, s{S_T0}, s{S_T2}
v_add_u32 v{V_T2}, s{S_T0}, v{V_T0}
v_lshlrev_b32 v{V_T2}, 10, v{V_T2}
s_lshl_b32 s{S_T0}, s{S_XCD}, 7
v_add_u32 v{V_T2}, s{S_T0}, v{V_T2}
global_load_dword v{V_UST+7}, v{V_T2}, {sp(P_U)}
v_lshlrev_b32 v{V_TW}, 3, v{V_LANE}
v_add_u32 v{V_TW}, s{S_WB}, v{V_TW}
s_mov_b32 s{S_LC}, 0x3fb8aa3b
s_mov_b32 s{S_LC+1}, 0x3e22f983
""")
    for x in kr_lines() + ur_lines(): g(x)
    g(f"""
v_and_b32 v{V_T0}, 31, v{V_LANE}
v_lshrrev_b32 v{V_T1}, 5, v{V_LANE}
v_lshlrev_b32 v{V_T1}, 4, v{V_T1}
v_add_u32 v{V_T1}, s{S_WB}, v{V_T1}
v_min_u32 v{V_T2}, 24, v{V_T0}
v_mul_u32_u24 v{V_T2}, {RS}, v{V_T2}
v_add_u32 v{V_AR}, v{V_T1}, v{V_T2}
v_mul_u32_u24 v{V_T2}, {RS}, v{V_T0}
v_add_u32 v{V_BR}, v{V_T1}, v{V_T2}
v_add_u32 v{V_BR}, {NA*RS}, v{V_BR}
v_lshlrev_b32 v{V_T0}, 4, v{V_LANE}
s_add_u32 s{S_T0}, s{S_WB}, 1008
v_sub_u32 v{V_KW}, s{S_T0}, v{V_T0}
v_add_u32 v{V_SP}, s{S_WB}, v{V_T0}
s_mov_b32 s{S_ODD}, 0xaaaaaaaa
s_mov_b32 s{S_ODD+1}, 0xaaaaaaaa
s_mov_b64 s[{S_L0}:{S_L0+1}], 1
""")
    for x in x_lines(0) + ot_lines([0, 2]): g(x)
    g(f"""
v_lshrrev_b32 v{V_T1}, 4, v{V_LANE}
v_mul_u32_u24 v{V_T1}, {UCH}, v{V_T1}
v_and_b32 v{V_T0}, 15, v{V_LANE}
v_lshl_add_u32 v{V_T1}, v{V_T0}, 4, v{V_T1}
s_mul_i32 s{S_T0}, s{S_C}, {UH}
s_add_u32 s{S_T0}, s{S_T0}, {UB}
v_add_u32 v{V_T1}, s{S_T0}, v{V_T1}
v_mov_b32 v{V_PT}, 0
v_mov_b32 v{V_PT+1}, 0
v_mov_b32 v{V_PT+2}, 0
v_mov_b32 v{V_PT+3}, 0
s_mov_b32 exec_lo, 0x7fff7fff
s_mov_b32 exec_hi, 0x7fff7fff
ds_write_b128 v{V_T1}, {vq(V_PT)}
s_mov_b64 exec, -1
""")
    dt_code(True)
    g("s_waitcnt vmcnt(3)")
    stamp_at(2)
    for M in (0, 1):
        unpack(MB(M)+R_AL, V_PAR, M); unpack(MB(M)+R_AL+1, V_PAR+1, M)
    both(lambda b: g(f"v_pk_mul_f32 {vp(b+R_AL)}, {vp(b+R_AL)}, {vp(V_DT)}"))
    direct(R_Z8, R_AL)
    g(f"v_mov_b32 v{V_DW}, 0x00003f80\nv_mov_b32 v{V_DW+1}, 0x00003f80")
    g(f"ds_write_b64 v{V_TW}, {vp(V_DW)} offset:{NA*RS}")
    wcount[0] = 1
    twrite(R_Z8, [NA+1])
    both(lambda b: cmul(b+R_Y, b+R_Z8, b+R_Z8, b+R_T))
    twrite(R_Y, [NA+2])
    for j in range(3, 32):
        both(lambda b: cmul(b+R_Y, b+R_Y, b+R_Z8, b+R_T))
        twrite(R_Y, [NA+j])
    for kb in range(16):
        g(f"ds_read_b128 {aq(4*kb)}, v{V_BR} offset:{32*kb}")
        if kb == 8: g("s_waitcnt lgkmcnt(4)")
    stamp_at(3)
    g("s_waitcnt vmcnt(0) lgkmcnt(0)\ns_barrier")
    pA = 1
    winsA = [-15 + 2*i for i in range(16)]
    q = []
    NPF = env('NPF', 7)
    def rdA(kb):
        g(f"ds_read_b128 {vq(V_AOP + 4*(kb % 8))}, v{V_AR} offset:{32*kb}"); q.append(("A", kb))
    def rdW(W):
        g(f"ds_read_b128 {aq(win_areg(W, pA))}, v{V_UR} offset:{16*(W+15)}"); q.append(("W", W))
    fill = []
    for kb in range(NPF): rdA(kb)
    for kb in range(16):
        last = max(i for i, t in enumerate(q) if t == ("A", kb))
        n_after = len(q) - 1 - last
        g(f"s_waitcnt lgkmcnt({min(n_after, 15)})")
        cin = f"v[{V_KD}:{V_KD+15}]" if kb else "0"
        g(f"v_mfma_f32_32x32x16_bf16 v[{V_KD}:{V_KD+15}], {vq(V_AOP+4*(kb%8))}, {aq(4*kb)}, {cin}")
        if kb + NPF < 16: rdA(kb + NPF)
        if kb >= 4 or True:
            pass
    stamp_at(4)
    g("s_nop 7\ns_nop 3")
    D = V_KD
    S0, S1, S2, S8, S10, S11, T10, T11 = [V_S + i for i in range(8)]
    def shift(dst, cur, nxt):
        g(f"v_mov_b32_dpp v{dst}, v{nxt} wave_rol:1 row_mask:0xf bank_mask:0xf")
        g(f"v_mov_b32_dpp v{dst}, v{cur} wave_shl:1 row_mask:0xf bank_mask:0xf")
    def val(p, beta):
        if p == 0: return D+beta if beta <= 7 else [S0, S1, S2][beta-8]
        if p == 1: return D+8 if beta <= 2 else (D+9 if beta <= 5 else S8)
        v, S, T = (D+10, S10, T10) if p == 2 else (D+11, S11, T11)
        return v if beta <= 3 else (T if beta == 4 else S)
    def epi(m):
        shift(S0, D+0, D+8)
        if m == 1:
            shift(S1, D+1, D+8); shift(S2, D+2, D+8)
        nn = [0]
        def chunk(p, e):
            rho = 2*m + e
            c = V_CH + 4 * (nn[0] % 2); nn[0] += 1
            for d in range(4):
                g(f"v_cvt_pk_bf16_f32 v{c+d}, v{val(p, rho+7-2*d)}, v{val(p, rho+6-2*d)}")
            g(f"ds_write_b128 v{V_KW}, {vq(c)} offset:{e*CP1 + 1024*(3-p)}")
        chunk(0, 0); chunk(0, 1)
        g(f"s_mov_b64 exec, 15")
        Z = V_CH + 8
        g(f"v_mov_b32 v{Z+2}, 0\nv_mov_b32 v{Z+3}, 0\nv_mov_b32 v{Z+6}, 0\nv_mov_b32 v{Z+7}, 0")
        for e in (0, 1):
            rho = 2*m + e
            b_ = Z + 4*e
            def kv(i): return f"v{D+i}" if i >= 0 else "0"
            if rho == 0:
                g(f"v_mov_b32 v{b_}, 0\nv_mov_b32 v{b_+1}, 0")
            else:
                g(f"v_cvt_pk_bf16_f32 v{b_}, {kv(rho-1)}, {kv(rho-2)}")
                g(f"v_cvt_pk_bf16_f32 v{b_+1}, {kv(rho-3)}, {kv(rho-4)}")
                g(f"v_cndmask_b32 v{b_}, 0, v{b_}, {sp(S_L0)}")
                g(f"v_cndmask_b32 v{b_+1}, 0, v{b_+1}, {sp(S_L0)}")
            g(f"ds_write_b128 v{V_SP}, {vq(b_)} offset:{e*CP1+4096}")
        g(f"s_mov_b64 exec, -1")
        g("s_waitcnt lgkmcnt(0)\ns_barrier")
        shift(S8, D+8, D+10); shift(S10, D+10, D+11); shift(S11, D+11, D+12)
        g(f"v_cndmask_b32 v{T10}, v{D+10}, v{S10}, {sp(S_ODD)}")
        g(f"v_cndmask_b32 v{T11}, v{D+11}, v{S11}, {sp(S_ODD)}")
        wi = 0
        for p in range(1, 4):
            for e in (0, 1):
                chunk(p, e)
                for _ in range(2):
                    W = winsA[wi]; wi += 1
                    g(f"ds_read_b128 {aq(win_areg(W, pA))}, v{V_UR} offset:{16*(W+15)}")
                if wi == 8: g("s_waitcnt lgkmcnt(6)")
        g("s_waitcnt lgkmcnt(8)")
        for W in winsA[wi:]:
            g(f"ds_read_b128 {aq(win_areg(W, pA))}, v{V_UR} offset:{16*(W+15)}")
    g(f"s_cmp_eq_u32 s{S_M}, 0\ns_cbranch_scc0 L_epi1")
    epi(0)
    g("s_branch L_epi_done\nL_epi1:")
    epi(1)
    g("L_epi_done:")
    stamp_at(5)
    g("s_waitcnt lgkmcnt(0)\ns_barrier")
    stamp_at(6)
    conv(1, 0, [])
    g("s_branch L_fin" if stamps else "s_endpgm")
    g("L_roleB:")
    g("L_pgB:\ns_cbranch_execz L_back")
    for t in (1, 2, 3):
        g(f"s_add_u32 s{S_UT+2*t}, s{P_U}, {t*0x80000}\ns_addc_u32 s{S_UT+2*t+1}, s{P_U+1}, 0")
    uload(P_U, 0); uload(S_UT+2, 1)
    g(f"s_mov_b32 s{S_C256}, 0x43800000\ns_mov_b32 s{S_C256+1}, 0x43800000")
    for x in ot_lines([1, 3]): g(x)
    g(f"""
v_and_b32 v{V_T0}, 1, v{V_LANE}
v_bfe_u32 v{V_T1}, v{V_LANE}, 1, 3
v_lshlrev_b32 v{V_T1}, 2, v{V_T1}
v_xor_b32 v{V_PT+1}, 1, v{V_T0}
v_mul_u32_u24 v{V_PT+1}, 3, v{V_PT+1}
v_add_u32 v{V_PT+2}, 1, v{V_T0}
s_cmp_eq_u32 s{S_M}, 0
s_cselect_b64 vcc, -1, 0
v_cndmask_b32 v{V_PT+1}, v{V_PT+2}, v{V_PT+1}, vcc
v_add_u32 v{V_T1}, v{V_T1}, v{V_PT+1}
v_lshrrev_b32 v{V_T2}, 4, v{V_LANE}
v_lshlrev_b32 v{V_T2}, 3, v{V_T2}
v_sub_u32 v{V_DF}, v{V_T1}, v{V_T2}
""")
    dt_code(False)
    g(f"""
s_lshl_b32 s{S_T0}, s{S_C}, 4
s_lshr_b64 {sp(S_DSK)}, {sp(S_DSK)}, s{S_T0}
s_and_b32 s{S_DSK}, s{S_DSK}, 0xffff
v_and_b32 v{V_T0}, 1, v{V_DF}
v_lshlrev_b32 v{V_T0}, 4, v{V_T0}
v_mov_b32 v{V_T1}, s{S_DSK}
v_lshlrev_b32 v{V_T1}, v{V_T0}, v{V_T1}
v_ashrrev_i32 v{V_T2}, 1, v{V_DF}
""")
    for d in range(4):
        g(f"v_cmp_eq_u32 vcc, {d}, v{V_T2}\ns_nop 1\nv_cndmask_b32 v{V_DF+d}, 0, v{V_T1}, vcc")
    g("s_waitcnt vmcnt(4)")
    stamp_at(2)
    for M in (0, 1):
        unpack(MB(M)+R_AL, V_PAR, M); unpack(MB(M)+R_AL+1, V_PAR+1, M)
        unpack(MB(M)+R_B, V_PAR+2, M); unpack(MB(M)+R_B+1, V_PAR+3, M)
        unpack(MB(M)+R_CC, V_PAR+4, M); unpack(MB(M)+R_CC+1, V_PAR+5, M)
    both(lambda b: g(f"v_pk_mul_f32 {vp(b+R_AL)}, {vp(b+R_AL)}, {vp(V_DT)}"))
    both(lambda b: cmul(b+R_C, b+R_CC, b+R_B, b+R_T))
    both(lambda b: g(f"v_pk_mul_f32 {vp(b+R_C)}, {vp(b+R_C)}, {vp(V_DT+2)} neg_hi:[1,0]"))
    direct(R_Z1, R_AL)
    both(lambda b: g(f"v_pk_mul_f32 {vp(b+R_T)}, {vp(b+R_AL)}, {sp(S_C256)}"))
    direct(R_Z256, R_T)
    rowpos = {0:[0],1:[1],2:[2],3:[3],256:[4,5],258:[6],260:[7,12,13],4:[8],5:[9],6:[10],7:[11],262:[14],264:[15],
              512:[16],516:[17],1024:[18],1536:[19],768:[20],772:[21],1280:[22],1792:[23],2048:[24]}
    wcount[0] = 0
    twrite(R_C, rowpos[0])
    both(lambda b: cmul(b+R_Z2, b+R_Z1, b+R_Z1, b+R_T))
    both(lambda b: cmul(b+R_Z4, b+R_Z2, b+R_Z2, b+R_T))
    prev = R_C
    for r in range(1, 8):
        dst = {2:R_X2, 4:R_X4, 6:R_X6}.get(r, R_X)
        both(lambda b: cmul(b+dst, b+prev, b+R_Z1, b+R_T, conj=True))
        twrite(dst, rowpos[r])
        prev = dst
    uload_to(S_UT+4, V_U2)
    both(lambda b: cmul(b+R_E, b+R_C, b+R_Z256, b+R_T, conj=True))
    twrite(R_E, rowpos[256])
    for src, r in ((R_X2, 258), (R_X6, 262), (R_X4, 260)):
        both(lambda b: cmul(b+R_X, b+src, b+R_Z256, b+R_T, conj=True))
        twrite(R_X, rowpos[r])
    both(lambda b: cmul(b+R_X, b+R_X, b+R_Z4, b+R_T, conj=True))
    twrite(R_X, rowpos[264])
    for k in range(2, 9):
        both(lambda b: cmul(b+R_E, b+R_E, b+R_Z256, b+R_T, conj=True))
        twrite(R_E, rowpos[256*k])
        if k in (2, 3):
            both(lambda b: cmul(b+R_X, b+R_E, b+R_Z4, b+R_T, conj=True))
            twrite(R_X, rowpos[256*k+4])
    stamp_at(3)
    g("s_waitcnt lgkmcnt(0)\ns_barrier")
    g("s_waitcnt vmcnt(2)")
    stage(0, 0, V_PT); stage(1, 1, V_PT)
    uload(S_UT+6, 0)
    stamp_at(4)
    g("s_waitcnt lgkmcnt(0)\ns_barrier")
    stamp_at(6)
    conv(0, 1, [])
    g("L_fin:")
    if stamps:
        g("s_waitcnt vmcnt(0)")
        stamp_at(11)
        g("s_memrealtime s[74:75]")
        g("s_waitcnt lgkmcnt(0)")
        g("s_load_dwordx2 s[14:15], s[0:1], 80")
        g("s_load_dwordx2 s[12:13], s[0:1], 88")
        g("s_waitcnt lgkmcnt(0)")
        g(f"s_lshl_b32 s11, s2, 3\ns_add_u32 s11, s11, s{S_W}\ns_lshl_b32 s11, s11, 7")
        g("s_add_u32 s12, s12, s11\ns_addc_u32 s13, s13, 0")
        g("s_mov_b64 exec, 1")
        g("v_mov_b32 v13, 0")
        for i in range(12):
            if i == 0: g("v_mov_b32 v14, s76")
            else: g(f"s_sub_u32 s66, s{76+2*i}, s76\nv_mov_b32 v14, s66")
            g(f"global_store_dword v13, v14, s[12:13] offset:{4*i}")
            g(f"s_cmp_eq_u32 s11, 0\ns_cbranch_scc0 L_nd{i}\nglobal_store_dword v13, v14, s[14:15] offset:{4*i}\nL_nd{i}:")
        g("s_sub_u32 s66, s98, s76\nv_mov_b32 v14, s66\nglobal_atomic_umax v13, v14, s[14:15] offset:48")
        g("s_sub_u32 s66, s80, s76\nv_mov_b32 v14, s66\nglobal_atomic_umax v13, v14, s[14:15] offset:52")
        g("v_mov_b32 v14, s74\nglobal_atomic_umax v13, v14, s[14:15] offset:56")
        g("s_not_b32 s66, s72\nv_mov_b32 v14, s66\nglobal_atomic_umax v13, v14, s[14:15] offset:60")
        g("v_mov_b32 v14, s72\nglobal_store_dword v13, v14, s[12:13] offset:120")
        g("v_mov_b32 v14, s74\nglobal_store_dword v13, v14, s[12:13] offset:124")
        g("s_waitcnt vmcnt(0)")
    g("L_end:\ns_endpgm")
    return g

HEADER = """; Kernarg layout (96 bytes): u, A_re, A_im, B_re, B_im, C_re, C_im, log_dt, Dskip, out, debug, ws (8 bytes each)
; @launch grid=(256,1,1) block=(512,1,1) lds=%d
.amdgcn_target "amdgcn-amd-amdhsa--gfx950"
.text
.globl standalone__ssm_conv_s4__prompt_kernel
.p2align 12
.fill 0x340, 4, 0xBF800000
.p2align 8
.type standalone__ssm_conv_s4__prompt_kernel,@function
standalone__ssm_conv_s4__prompt_kernel:
""" % LDS_TOTAL
def footer(ns): return """.section .rodata,"a"
.p2align 6
.amdhsa_kernel standalone__ssm_conv_s4__prompt_kernel
  .amdhsa_next_free_vgpr 256
  .amdhsa_next_free_sgpr %d
  .amdhsa_accum_offset 128
  .amdhsa_group_segment_fixed_size 0
  .amdhsa_kernarg_size 96
  .amdhsa_user_sgpr_count 2
  .amdhsa_user_sgpr_kernarg_segment_ptr 1
  .amdhsa_system_sgpr_workgroup_id_x 1
.end_amdhsa_kernel
""" % ns
def assemble_sizes(text):
    import subprocess, re, tempfile
    sys.path.insert(0, "cdna_kernels")
    open("_p.s", "w").write(text)
    r = subprocess.run(["clang", "-x", "assembler", "-target", "amdgcn-amd-amdhsa", "-mcpu=gfx950", "-c", "_p.s", "-o", "_p.o"], capture_output=True, text=True)
    assert r.returncode == 0, r.stderr
    d = subprocess.run(["llvm-objdump", "-d", "--mcpu=gfx950", "_p.o"], capture_output=True, text=True).stdout
    addrs = []
    started = False
    for ln in d.split("\n"):
        if "<standalone__ssm_conv_s4__prompt_kernel>:" in ln: started = True; continue
        if not started: continue
        m = re.search(r"// ([0-9A-F]{12}):", ln)
        if m: addrs.append(int(m.group(1), 16))
    return addrs

if __name__ == "__main__":
    out = sys.argv[1]
    st = len(sys.argv) > 2 and sys.argv[2] == "stamps"
    g = gen(st)
    def isinstr(l): return not (l.endswith(":") or l.startswith(".") or l.startswith(";"))
    for pg in (1, 2):
        tmp = G(); tmp.L = list(g.L)
        have = [l for l in tmp.L if l.startswith("L_pg") and l.endswith(":")]
        for k in (1, 2):
            if f"L_pg{k}:" not in have: tmp.L.append(f"L_pg{k}:"); tmp.L.append("s_endpgm")
        addrs = assemble_sizes(HEADER + tmp.text() + footer(102 if st else 72))
        base = addrs[0]
        idx = [i for i, l in enumerate(g.L) if isinstr(l)]
        pos = None
        for n, i in enumerate(idx):
            if addrs[n] - base >= pg * 4096:
                pos = i; break
        if pos is None:
            g.L += [f"L_pg{pg}:", "s_cbranch_execz L_back", "s_endpgm"]
        else:
            g.L[pos:pos] = [f"L_pg{pg}:", "s_cbranch_execz L_back"]
    open(out, "w").write(HEADER + g.text() + footer(102 if st else 72))
    print("LDS", LDS_TOTAL, "lines", len(g.L))
```

```python
import sys, os
OPT = os.environ.get('OPT', '').split(',')
def env(n, d): return int(os.environ.get(n, d))

class G:
    def __init__(self): self.L = []
    def __call__(self, s):
        for ln in s.strip("\n").split("\n"):
            ln = ln.strip()
            if ln: self.L.append(ln)
    def text(self):
        out = []
        for l in self.L:
            out.append(l if (l.endswith(":") or l.startswith(".") or l.startswith(";")) else "    " + l)
        return "\n".join(out) + "\n"

def vp(i): return f"v[{i}:{i+1}]"
def vq(i): return f"v[{i}:{i+3}]"
def aq(i): return f"a[{i}:{i+3}]"
def sp(i): return f"s[{i}:{i+1}]"

RS = 528; NA = 25; WR = 30208
UB = 4 * WR; UCH = 5120; UH = 1280
XB = UB + 4 * UCH
LDS_TOTAL = XB + 16384
CP1 = 4224

S_W, S_XCD, S_IDX, S_M, S_D0, S_D, S_C, S_R = 3, 4, 5, 6, 7, 8, 9, 10
P_U, P_ARE, P_AIM, P_BRE, P_BIM, P_CRE, P_CIM, P_LDT = 16, 18, 20, 22, 24, 26, 28, 30
P_DSK, P_OUT = 32, 34
S_LDT, S_DSK = 36, 38
S_C256, S_LC = 42, 44
S_PLO, S_PHI = 46, 47
S_ODD = 48
S_L0 = 40
S_UT = 50
S_OT = 58
S_T0, S_T1, S_T2, S_T3 = 66, 67, 68, 69
S_WB = 70
S_D02 = 71

V_LANE = 1
V_TW, V_AR, V_BR, V_KW, V_KR, V_UR, V_US, V_UG, V_XW, V_XR, V_OG = 2, 3, 4, 5, 6, 7, 8, 9, 10, 11, 12
V_T0, V_T1, V_T2 = 13, 14, 15
V_UST = 16
V_DF = 24
V_DT = 28
V_ACC = 32
V_MB = 48
MSZ = 30
def MB(M): return V_MB + MSZ * M
R_AL, R_C, R_Z1, R_Z2, R_Z4, R_Z256, R_T, R_X, R_E, R_X2, R_X4, R_X6, R_B, R_CC, R_M = [2*i for i in range(15)]
R_Z8, R_Y = R_Z1, R_X
V_DW = 112
V_KD = 112
V_AOP = 48
V_S = 80
V_CH = 88
V_RK = 88
V_RW = 48
V_XO = 104
V_PT = 120
V_PO = 123
V_U2 = 124
V_SP = 24
V_MODD = 25
V_ML0 = 26
V_PAR = 106
V_LDT = 122
V_DSK = 121

PRE_A = set()
def gen(stamps=False):
    g = G()
    def stamp_raw(i):
        if stamps: g(f"s_memtime s[{76+2*i}:{77+2*i}]")
    def stamp_at(i):
        if 'convprof' in OPT:
            if i == 6: stamp_raw(0)
            if i == 11: stamp_raw(11)
            return
        stamp_raw(i)
    def common_early():
        g(f"""
v_lshrrev_b32 v{V_UG}, 2, v{V_LANE}
v_lshlrev_b32 v{V_UG}, 5, v{V_UG}
v_and_b32 v{V_T2}, 3, v{V_LANE}
v_lshl_add_u32 v{V_UG}, v{V_T2}, 1, v{V_UG}
s_lshl_b32 s{S_T0}, s{S_C}, 3
v_add_u32 v{V_UG}, s{S_T0}, v{V_UG}
v_lshlrev_b32 v{V_UG}, 10, v{V_UG}
v_add_u32 v{V_UG}, s{S_D02}, v{V_UG}
v_lshlrev_b32 v{V_TW}, 3, v{V_LANE}
v_add_u32 v{V_TW}, s{S_WB}, v{V_TW}
s_mov_b32 s{S_LC}, 0x3fb8aa3b
s_mov_b32 s{S_LC+1}, 0x3e22f983
""")
    def unpack(dst, src, M):
        if M == 0: g(f"v_lshlrev_b32 v{dst}, 16, v{src}")
        else: g(f"v_and_b32 v{dst}, 0xffff0000, v{src}")

    def uload(base, slot):
        g(f"global_load_dwordx2 {vp(V_UST+4*slot)}, v{V_UG}, {sp(base)}")
        g(f"global_load_dwordx2 {vp(V_UST+4*slot+2)}, v{V_UG}, {sp(base)} offset:1024")
    def uload_to(base, reg):
        g(f"global_load_dwordx2 {vp(reg)}, v{V_UG}, {sp(base)}")
        g(f"global_load_dwordx2 {vp(reg+2)}, v{V_UG}, {sp(base)} offset:1024")
    def stage_txt(t, slot, tmp4):
        b = V_UST + 4*slot if slot < 8 else slot
        L = [f"v_perm_b32 v{V_T0}, v{b+2}, v{b}, s{S_PLO}",
             f"v_perm_b32 v{V_T1}, v{b+2}, v{b}, s{S_PHI}",
             f"v_perm_b32 v{V_T2}, v{b+3}, v{b+1}, s{S_PLO}",
             f"v_perm_b32 v{tmp4}, v{b+3}, v{b+1}, s{S_PHI}"]
        W = [f"ds_write_b32 v{V_US}, v{r} offset:{UCH*c + 256*t}" for c, r in enumerate((V_T0, V_T1, V_T2, tmp4))]
        return L, W
    def stage(t, slot, tmp4):
        L, W = stage_txt(t, slot, tmp4)
        for x in L + W: g(x)
    def us_addr():
        g(f"""
s_mul_i32 s{S_T0}, s{S_C}, {UH}
s_add_u32 s{S_T0}, s{S_T0}, {UB + 240}
v_lshlrev_b32 v{V_US}, 2, v{V_LANE}
v_add_u32 v{V_US}, s{S_T0}, v{V_US}
s_mov_b32 s{S_PLO}, 0x05040100
s_mov_b32 s{S_PHI}, 0x07060302
""")
    def dt_code(scale8, n_after):
        g(f"""
s_waitcnt vmcnt({n_after})
v_lshlrev_b32 v{V_LDT}, 16, v{V_LDT}
v_mov_b32 v{V_T0}, s{S_LC}
v_mul_f32 v{V_T1}, v{V_LDT}, v{V_T0}
v_fma_f32 v{V_T2}, v{V_LDT}, v{V_T0}, -v{V_T1}
v_mov_b32 v{V_T0}, 0x32a57060
v_fma_f32 v{V_T2}, v{V_LDT}, v{V_T0}, v{V_T2}
v_exp_f32 v{V_T1}, v{V_T1}
v_mul_f32 v{V_T2}, 0x3f317218, v{V_T2}
v_fma_f32 v{V_T1}, v{V_T1}, v{V_T2}, v{V_T1}
v_cvt_pk_bf16_f32 v{V_T1}, v{V_T1}, v{V_T1}
v_lshlrev_b32 v{V_DT+2}, 16, v{V_T1}
""")
        if scale8:
            g(f"v_mul_f32 v{V_DT+2}, 0x41000000, v{V_DT+2}")
        g(f"v_mov_b32 v{V_DT+3}, v{V_DT+2}")
        g(f"v_pk_mul_f32 {vp(V_DT)}, {vp(V_DT+2)}, {sp(S_LC)}")
    def cmul(dst, a, bb, tmp, conj=False):
        g(f"v_pk_mul_f32 {vp(tmp)}, {vp(a)}, {vp(bb)} op_sel_hi:[1,0]")
        neg = "neg_hi:[0,1,0]" if conj else "neg_lo:[0,1,0]"
        g(f"v_pk_fma_f32 {vp(dst)}, {vp(a)}, {vp(bb)}, {vp(tmp)} op_sel:[1,1,0] op_sel_hi:[0,1,1] {neg}")
    def both(f):
        for M in (0, 1): f(MB(M))
    def direct(dst, arg):
        both(lambda b: g(f"v_exp_f32 v{b+R_M}, v{b+arg}"))
        both(lambda b: g(f"v_fract_f32 v{b+R_M+1}, v{b+arg+1}"))
        both(lambda b: g(f"v_cos_f32 v{b+dst}, v{b+R_M+1}"))
        both(lambda b: g(f"v_sin_f32 v{b+dst+1}, v{b+R_M+1}"))
        g("s_nop 0")
        both(lambda b: g(f"v_pk_mul_f32 {vp(b+dst)}, {vp(b+dst)}, {vp(b+R_M)} op_sel_hi:[1,0]"))
    wcount = [0]
    def twrite(src_off, positions):
        p = V_DW + 2 * (wcount[0] % 4); wcount[0] += 1
        for M in (0, 1):
            b = MB(M)
            g(f"v_cvt_pk_bf16_f32 v{p+M}, v{b+src_off}, v{b+src_off+1}")
        for pos in positions:
            g(f"ds_write_b64 v{V_TW}, {vp(p)} offset:{pos*RS}")
    def kr_lines():
        return f"""
v_and_b32 v{V_T0}, 1, v{V_LANE}
v_bfe_u32 v{V_T1}, v{V_LANE}, 1, 3
s_xor_b32 s{S_T0}, s{S_M}, 1
v_xor_b32 v{V_T2}, 1, v{V_T0}
v_and_b32 v{V_T2}, s{S_T0}, v{V_T2}
v_add_u32 v{V_T2}, v{V_T1}, v{V_T2}
v_lshlrev_b32 v{V_T2}, 3, v{V_T2}
v_mul_u32_u24 v{V_KR}, {CP1}, v{V_T0}
v_sub_u32 v{V_KR}, v{V_KR}, v{V_T2}
v_lshrrev_b32 v{V_T2}, 4, v{V_LANE}
v_lshlrev_b32 v{V_T2}, 4, v{V_T2}
v_add_u32 v{V_KR}, v{V_KR}, v{V_T2}
s_add_u32 s{S_T0}, s{S_WB}, 64
v_add_u32 v{V_KR}, s{S_T0}, v{V_KR}
""".strip().split("\n")
    def ur_lines():
        return f"""
v_lshrrev_b32 v{V_T1}, 4, v{V_LANE}
v_mul_u32_u24 v{V_T1}, {UH}, v{V_T1}
v_and_b32 v{V_T0}, 15, v{V_LANE}
v_lshlrev_b32 v{V_T2}, 4, v{V_T0}
v_add_u32 v{V_UR}, v{V_T1}, v{V_T2}
s_mul_i32 s{S_T0}, s{S_C}, {UCH}
s_add_u32 s{S_T0}, s{S_T0}, {UB}
v_add_u32 v{V_UR}, s{S_T0}, v{V_UR}
""".strip().split("\n")
    def x_lines(role):
        return f"""
v_lshlrev_b32 v{V_T1}, 4, v{V_LANE}
s_lshl_b32 s{S_T0}, s{S_C}, 11
s_add_u32 s{S_T0}, s{S_T0}, {XB + 1024*role}
v_add_u32 v{V_XW}, s{S_T0}, v{V_T1}
v_and_b32 v{V_T0}, 7, v{V_LANE}
v_lshrrev_b32 v{V_T1}, 5, v{V_LANE}
v_lshl_add_u32 v{V_T0}, v{V_T1}, 3, v{V_T0}
v_bfe_u32 v{V_T1}, v{V_LANE}, 3, 2
v_lshlrev_b32 v{V_XR}, 4, v{V_T0}
v_lshl_add_u32 v{V_XR}, v{V_T1}, 2, v{V_XR}
s_lshl_b32 s{S_T0}, s{S_C}, 8
s_add_u32 s{S_T0}, s{S_T0}, {XB}
v_add_u32 v{V_XR}, s{S_T0}, v{V_XR}
v_lshlrev_b32 v{V_OG}, 5, v{V_T0}
v_lshrrev_b32 v{V_T2}, 1, v{V_T1}
v_lshl_add_u32 v{V_OG}, v{V_T2}, 2, v{V_OG}
v_and_b32 v{V_T1}, 1, v{V_T1}
s_cmp_eq_u32 s{S_M}, 0
s_cselect_b32 s{S_T2}, -3, 1
s_cselect_b32 s{S_T3}, 3, 1
v_mul_i32_i24 v{V_T1}, s{S_T2}, v{V_T1}
v_add_u32 v{V_T1}, s{S_T3}, v{V_T1}
v_add_u32 v{V_OG}, v{V_OG}, v{V_T1}
s_lshl_b32 s{S_T0}, s{S_C}, 3
v_add_u32 v{V_OG}, s{S_T0}, v{V_OG}
v_lshlrev_b32 v{V_OG}, 10, v{V_OG}
v_add_u32 v{V_OG}, s{S_D02}, v{V_OG}
""".strip().split("\n")
    def ot_lines(tiles):
        L = []
        for i, t in enumerate(tiles):
            L += [f"s_add_u32 s{S_OT+2*i}, s{P_OUT}, {t*0x80000}", f"s_addc_u32 s{S_OT+2*i+1}, s{P_OUT+1}, 0"]
        return L

    if stamps: g("s_memrealtime s[72:73]")
    stamp_at(0)
    g(f"""
s_cmp_ge_u32 s2, 256
s_cbranch_scc1 L_end
s_load_dwordx16 s[16:31], s[0:1], 0
s_load_dwordx4 s[32:35], s[0:1], 64
v_lshrrev_b32 v{V_T0}, 6, v0
v_and_b32 v{V_LANE}, 63, v0
v_readfirstlane_b32 s{S_W}, v{V_T0}
s_and_b32 s{S_XCD}, s2, 7
s_lshr_b32 s{S_IDX}, s2, 3
s_and_b32 s{S_M}, s{S_IDX}, 1
s_lshr_b32 s{S_T0}, s{S_IDX}, 1
s_lshl_b32 s{S_T0}, s{S_T0}, 2
s_lshl_b32 s{S_D0}, s{S_XCD}, 6
s_add_u32 s{S_D0}, s{S_D0}, s{S_T0}
s_and_b32 s{S_C}, s{S_W}, 3
s_lshr_b32 s{S_R}, s{S_W}, 2
s_add_u32 s{S_D}, s{S_D0}, s{S_C}
s_lshl_b32 s{S_D02}, s{S_D0}, 1
s_mul_i32 s{S_WB}, s{S_C}, {WR}
s_lshl_b32 s{S_T0}, s{S_D}, 8
v_lshlrev_b32 v{V_PO}, 2, v{V_LANE}
v_add_u32 v{V_PO}, s{S_T0}, v{V_PO}
v_mov_b32 v{V_UG}, 0
v_mov_b32 v{V_OG}, 0
s_cmp_eq_u32 s{S_R}, 0
s_cbranch_scc1 L_wait
""")
    common_early(); us_addr()
    for x in kr_lines() + ur_lines() + x_lines(1): g(x)
    g(f"""
L_wait:
s_lshl_b32 s{S_T0}, s{S_D}, 1
v_mov_b32 v{V_T0}, s{S_T0}
s_cmp_eq_u32 s{S_R}, 0
s_waitcnt lgkmcnt(0)
""")
    stamp_at(1)
    g(f"global_load_ushort v{V_LDT}, v{V_T0}, {sp(P_LDT)}")
    g(f"global_load_dword v{V_PAR}, v{V_PO}, {sp(P_ARE)}")
    g(f"global_load_dword v{V_PAR+1}, v{V_PO}, {sp(P_AIM)}")
    g("s_cbranch_scc1 L_skipB")
    for i, p in enumerate([P_BRE, P_BIM, P_CRE, P_CIM]):
        g(f"global_load_dword v{V_PAR+2+i}, v{V_PO}, {sp(p)}")
    g(f"global_load_ushort v{V_DSK}, v{V_T0}, {sp(P_DSK)}")
    g("s_barrier")
    for t in (1, 2, 3):
        g(f"s_add_u32 s{S_UT+2*t}, s{P_U}, {t*0x80000}\ns_addc_u32 s{S_UT+2*t+1}, s{P_U+1}, 0")
    if 'earlyu' in OPT: uload(P_U, 0); uload(S_UT+2, 1)
    g(f"""
s_mov_b64 exec, 0
s_cmp_eq_u32 s{S_W}, 4
s_cbranch_scc1 L_pg1
s_cmp_eq_u32 s{S_W}, 5
s_cbranch_scc1 L_pg2
L_back:
s_mov_b64 exec, -1
s_branch L_roleB
L_skipB:
""")
    if 'warm' in OPT:
        g(f"v_mov_b32 v{V_T0}, 0")
        g(f"global_load_dword v{V_PAR+3}, v{V_T0}, {sp(P_OUT)}")
    g("s_barrier")

    def win_areg(W, p): return 64 + 4 * ((W + 15 - (1 - p)) // 2)
    def conv(p, role, extra):
        par = lambda lo, hi: [x for x in range(lo, hi) if x % 2 == p]
        M_ = lambda t, sig: ("m", t, sig, 16*t - sig)
        D_ = lambda t: ("d", t, None, 16*t)
        jobs = []; done_at = {}
        for s_ in par(0, 16):
            jobs += [M_(0, s_), M_(1, s_)]
            if p == 0 and s_ == 0: jobs.append(D_(0))
        done_at[0] = max(i for i, j in enumerate(jobs) if j[1] == 0)
        for s_ in par(16, 32):
            jobs += [M_(1, s_), M_(2, s_)]
            if p == 0 and s_ == 16: jobs.append(D_(1))
        done_at[1] = max(i for i, j in enumerate(jobs) if j[1] == 1)
        for s_ in par(32, 48): jobs += [M_(2, s_), M_(3, s_)]
        for W in par(17, 33):
            jobs += [M_(2, 32 - W), M_(3, 48 - W)]
            if p == 0 and W == 32: jobs.append(D_(2))
        done_at[2] = max(i for i, j in enumerate(jobs) if j[1] == 2)
        a_ = par(48, 64); b_ = par(33, 49)
        for i in range(8):
            jobs.append(M_(3, a_[i])); jobs.append(M_(3, 48 - b_[i]))
        if p == 0: jobs.append(D_(3))
        done_at[3] = len(jobs) - 1
        N = len(jobs)
        def kreg(sig):
            if sig < 32: return aq(4 * (sig // 2))
            return vq(V_RK + 4 * (((sig - 32) // 2) % 4))
        def kreg_lo(sig):
            if sig < 32: return f"a[{4*(sig//2)}:{4*(sig//2)+1}]", f"a[{4*(sig//2)+2}:{4*(sig//2)+3}]"
            bb = V_RK + 4 * (((sig - 32) // 2) % 4)
            return vp(bb), vp(bb + 2)
        def wreg(W):
            if W <= 16: return aq(win_areg(W, p))
            return vq(V_RW + 4 * (((W - 17) // 2) % 4))
        gaps = {i: [] for i in range(-1, N)}
        nlds = {i: 0 for i in range(-1, N)}
        DA, DB, DR, DS = env('DA', 3), env('DB', 7), env('DR', 0), env('DS', 6)
        barpos = {}
        orig = {}
        def put(i, op, lds=False):
            orig[op] = i
            i = min(i, N - 1)
            gaps[i].append(op)
            if lds: nlds[i] += 1
            return i
        for t in range(4):
            j = done_at[t]
            put(j + DA, ("xw", t), True)
            bp = put(j + DB, ("bar", t))
            barpos[t] = bp
            if (t & 1) == role:
                if role == 1:
                    put(j + DB, ("rdout", t))
                else:
                    for k in range(4): put(bp + DR + k, ("xr", t, k), True)
                    put(bp + DR + DS, ("xa", t, 0)); put(bp + DR + DS + 1, ("xa", t, 1)); put(bp + DR + DS + 2, ("xa", t, 2)); put(bp + DR + DS + 3, ("st", t))
            if role == 1 and t == 0:
                put(j + DB, ("stage", 3))
        B2B = env('B2B', 12)
        if role == 1:
            put(B2B, ("b2b",)); put(B2B + env('ST2', 2), ("stage", 2))
        first = {}; last = {}
        for i, j in enumerate(jobs):
            keys = [("w", j[3])] + ([("k", j[2])] if j[0] == "m" else [])
            for k in keys:
                first.setdefault(k, i); last[k] = i
        reads = []
        for k, i in sorted(first.items(), key=lambda x: x[1]):
            if k[0] == "w":
                if k[1] <= 16:
                    if role == 0 and k[1] in PRE_A: continue
                    reads.append((i, -1, ("w", k[1]))); continue
                rel = barpos[0] if k[1] <= 32 else barpos[1]
                if k[1] - 8 >= 17: rel = max(rel, last[("w", k[1] - 8)])
                reads.append((i, rel, ("w", k[1])))
            else:
                rel = -1
                if role == 1 and k[1] >= 16: rel = B2B
                if k[1] >= 40: rel = max(rel, last[("k", k[1] - 8)])
                reads.append((i, rel, ("k", k[1], 0))); reads.append((i, rel, ("k", k[1], 1)))
        LMAX, LMIN, INIT = env('LMAX', 14), env('LMIN', 5), env('INIT', 10)
        pos = -1; ninit = 0
        for (d, rel, key) in reads:
            g0 = max(rel, d - LMAX, pos)
            if g0 <= -1 and ninit < INIT:
                i = -1; ninit += 1
            else:
                i = max(g0, 0)
                while nlds[i] >= 1 and i < d - LMIN: i += 1
                i = min(i, d - env('GRP', 1) - (d % env('GRP', 1)) if env('GRP', 1) > 1 else d - 1)
                i = max(i, rel)
            gaps[i].append(("rd", key)); nlds[i] += 1; pos = i
        q = []; st = {"waited": 0}
        def room(n):
            out = len(q) - st["waited"]
            if out + n > 15:
                keep = 15 - n
                g(f"s_waitcnt lgkmcnt({keep})"); st["waited"] = len(q) - keep
        def need(tags):
            lastq = -1
            for i, tg in enumerate(q):
                if tg in tags: lastq = i
            if lastq >= st["waited"]:
                g(f"s_waitcnt lgkmcnt({len(q)-1-lastq})"); st["waited"] = lastq + 1
        lastacc = {}; inited = set()
        def emit(op):
            k = op[0]
            if k == "rd":
                key = op[1]; room(1)
                if key[0] == "w":
                    g(f"ds_read_b128 {wreg(key[1])}, v{V_UR} offset:{16*(key[1]+15)}"); q.append(("w", key[1]))
                else:
                    lo, hi = kreg_lo(key[1])
                    g(f"ds_read_b64 {lo if key[2] == 0 else hi}, v{V_KR} offset:{64*(63-key[1]) + 8*key[2]}"); q.append(("k", key[1]))
            elif k == "xw":
                t = op[1]
                gap = len(g.L) - lastacc[t]
                if gap < 8: g(f"s_nop {8 - gap - 1}")
                room(1)
                g(f"ds_write_b128 v{V_XW}, {vq(V_ACC+4*t)} offset:{8192*(t&1)}"); q.append(("x", t))
            elif k == "stv":
                t = op[1]
                g(f"s_waitcnt vmcnt({2 if t == 0 else 0})")
                L, Wr = stage_txt(2, V_U2, V_PT) if t == 0 else stage_txt(3, 0, V_PT)
                for x in L: g(x)
            elif k == "stw":
                t, c = op[1], op[2]
                L, Wr = stage_txt(2, V_U2, V_PT) if t == 0 else stage_txt(3, 0, V_PT)
                room(1); g(Wr[c]); q.append(("x", t))
            elif k == "stage":
                t = op[1]
                g(f"s_waitcnt vmcnt({2 if t == 2 else 0})")
                L, Wr = stage_txt(2, V_U2, V_PT) if t == 2 else stage_txt(3, 0, V_PT)
                for x in L: g(x)
                room(4)
                for x in Wr:
                    g(x); q.append(("x", t - 2))
            elif k == "rdout":
                t = op[1]
                for c in range(4): emit(("xr", t, c))
                for c in range(3): emit(("xa", t, c))
                emit(("st", t))
            elif k == "b2b":
                g("s_barrier")
            elif k == "bar":
                need({("x", op[1])}); g("s_barrier")
            elif k == "xr":
                t, c = op[1], op[2]; room(1)
                g(f"ds_read2st64_b32 {vp(V_XO+2*c)}, v{V_XR} offset0:{8*c+32*(t&1)} offset1:{8*c+4+32*(t&1)}"); q.append(("y", t))
            elif k == "xa":
                t, c = op[1], op[2]
                if c == 0:
                    need({("y", t)})
                    g(f"v_add_f32 v{V_XO}, v{V_XO}, v{V_XO+1}\nv_add_f32 v{V_XO+2}, v{V_XO+2}, v{V_XO+3}")
                elif c == 1:
                    g(f"v_add_f32 v{V_XO+4}, v{V_XO+4}, v{V_XO+5}\nv_add_f32 v{V_XO+6}, v{V_XO+6}, v{V_XO+7}")
                else:
                    g(f"v_cvt_pk_bf16_f32 v{V_XO}, v{V_XO}, v{V_XO+2}\nv_cvt_pk_bf16_f32 v{V_XO+1}, v{V_XO+4}, v{V_XO+6}")
            elif k == "st":
                t = op[1]
                g(f"global_store_dwordx2 v{V_OG}, {vp(V_XO)}, {sp(S_OT+2*(t>>1))}")
                if 'nocs' not in OPT or t == 3 - (1 - role): stamp_at(10)
        order = {"xw": 0, "stv": 1, "stw": 2, "bar": 3, "b2b": 3, "rdout": 3.5, "stage": 3.7, "xr": 4, "rd": 5, "xa": 6, "st": 7}
        GRP = env('GRP', 1)
        PM = env('PAM', -1) if role == 0 else env('PBM', -1)
        PO = env('PAO', -1) if role == 0 else env('PBO', -1)
        if PO >= 0: g(f"s_setprio {PO}")
        for op in sorted(gaps[-1], key=lambda o: 0 if o[0] == 'rd' else 1): emit(op)
        pending = []
        for i, j in enumerate(jobs):
            first_in_grp = (i % GRP == 0)
            last_in_grp = (i % GRP == GRP - 1) or i == N - 1
            if first_in_grp:
                alltags = set()
                for jj in jobs[i:i + GRP]:
                    if jj[0] == "m": alltags.add(("k", jj[2]))
                    if jj[3] > 16 or role == 1 or jj[3] not in PRE_A: alltags.add(("w", jj[3]))
                for op in list(pending):
                    pass
                need(alltags)
                if PM >= 0: g(f"s_setprio {PM}")
            tags = set()
            if j[0] == "m": tags.add(("k", j[2]))
            if j[3] > 16 or role == 1 or j[3] not in PRE_A: tags.add(("w", j[3]))
            for tg in tags: assert tg in q, (p, i, j, tg)
            need(tags)
            t = j[1]; acc = vq(V_ACC + 4*t)
            cin = acc if t in inited else "0"
            inited.add(t)
            A = kreg(j[2]) if j[0] == "m" else vq(V_DF)
            g(f"v_mfma_f32_16x16x32_bf16 {acc}, {A}, {wreg(j[3])}, {cin}")
            lastacc[t] = len(g.L)
            if 'convprof' in OPT and (i + 1) % 8 == 0: stamp_raw((i + 1) // 8)
            ops = gaps[i]
            if i < N - 1: ops = sorted(ops, key=lambda o: order[o[0]])
            else:
                ops = sorted(ops, key=lambda o: (orig.get(o, N - 1), order[o[0]]))
            pending += ops
            if last_in_grp:
                if PM >= 0: g(f"s_setprio {PO}")
                for op in pending: emit(op)
                pending = []

    g(f"""
v_and_b32 v{V_T0}, 15, v{V_LANE}
s_lshl_b32 s{S_T0}, s{S_IDX}, 6
s_lshl_b32 s{S_T2}, s{S_C}, 4
s_add_u32 s{S_T0}, s{S_T0}, s{S_T2}
v_add_u32 v{V_T2}, s{S_T0}, v{V_T0}
v_lshlrev_b32 v{V_T2}, 10, v{V_T2}
s_lshl_b32 s{S_T0}, s{S_XCD}, 7
v_add_u32 v{V_T2}, s{S_T0}, v{V_T2}
v_mov_b32 v{V_UST+6}, v{V_T2}
""")
    if 'latepf' not in OPT: g(f"global_load_dword v{V_UST+7}, v{V_UST+6}, {sp(P_U)}")
    g(f"""
v_lshlrev_b32 v{V_TW}, 3, v{V_LANE}
v_add_u32 v{V_TW}, s{S_WB}, v{V_TW}
s_mov_b32 s{S_LC}, 0x3fb8aa3b
s_mov_b32 s{S_LC+1}, 0x3e22f983
""")
    for x in kr_lines() + ur_lines(): g(x)
    g(f"""
v_and_b32 v{V_T0}, 31, v{V_LANE}
v_lshrrev_b32 v{V_T1}, 5, v{V_LANE}
v_lshlrev_b32 v{V_T1}, 4, v{V_T1}
v_add_u32 v{V_T1}, s{S_WB}, v{V_T1}
v_min_u32 v{V_T2}, 24, v{V_T0}
v_mul_u32_u24 v{V_T2}, {RS}, v{V_T2}
v_add_u32 v{V_AR}, v{V_T1}, v{V_T2}
v_mul_u32_u24 v{V_T2}, {RS}, v{V_T0}
v_add_u32 v{V_BR}, v{V_T1}, v{V_T2}
v_add_u32 v{V_BR}, {NA*RS}, v{V_BR}
v_lshlrev_b32 v{V_T0}, 4, v{V_LANE}
s_add_u32 s{S_T0}, s{S_WB}, 1008
v_sub_u32 v{V_KW}, s{S_T0}, v{V_T0}
v_add_u32 v{V_SP}, s{S_WB}, v{V_T0}
v_and_b32 v{V_MODD}, 1, v{V_LANE}
v_sub_u32 v{V_MODD}, 0, v{V_MODD}
v_min_u32 v{V_ML0}, 1, v{V_LANE}
v_add_u32 v{V_ML0}, -1, v{V_ML0}
""")
    for x in x_lines(0) + ot_lines([0, 2]): g(x)
    g(f"""
v_lshrrev_b32 v{V_T1}, 4, v{V_LANE}
v_mul_u32_u24 v{V_T1}, {UCH}, v{V_T1}
v_and_b32 v{V_T0}, 15, v{V_LANE}
v_lshl_add_u32 v{V_T1}, v{V_T0}, 4, v{V_T1}
s_mul_i32 s{S_T0}, s{S_C}, {UH}
s_add_u32 s{S_T0}, s{S_T0}, {UB}
v_add_u32 v{V_T1}, s{S_T0}, v{V_T1}
v_mov_b32 v{V_ACC}, 0
v_mov_b32 v{V_ACC+1}, 0
v_mov_b32 v{V_ACC+2}, 0
v_mov_b32 v{V_ACC+3}, 0
s_mov_b32 exec_lo, 0x7fff7fff
s_mov_b32 exec_hi, 0x7fff7fff
ds_write_b128 v{V_T1}, {vq(V_ACC)}
s_mov_b64 exec, -1
""")
    if 'latepf' in OPT: g(f"global_load_dword v{V_UST+7}, v{V_UST+6}, {sp(P_U)}")
    dt_code(True, 4 if 'warm' in OPT else 3)
    g("s_waitcnt vmcnt(2)" if 'warm' in OPT else "s_waitcnt vmcnt(1)")
    stamp_at(2)
    for M in (0, 1):
        unpack(MB(M)+R_AL, V_PAR, M); unpack(MB(M)+R_AL+1, V_PAR+1, M)
    both(lambda b: g(f"v_pk_mul_f32 {vp(b+R_AL)}, {vp(b+R_AL)}, {vp(V_DT)}"))
    direct(R_Z8, R_AL)
    g(f"v_mov_b32 v{V_DW}, 0x00003f80\nv_mov_b32 v{V_DW+1}, 0x00003f80")
    g(f"ds_write_b64 v{V_TW}, {vp(V_DW)} offset:{NA*RS}")
    wcount[0] = 1
    twrite(R_Z8, [NA+1])
    both(lambda b: cmul(b+R_Y, b+R_Z8, b+R_Z8, b+R_T))
    twrite(R_Y, [NA+2])
    for j in range(3, 32):
        both(lambda b: cmul(b+R_Y, b+R_Y, b+R_Z8, b+R_T))
        twrite(R_Y, [NA+j])
    for kb in range(16):
        g(f"ds_read_b128 {aq(4*kb)}, v{V_BR} offset:{32*kb}")
        if kb == 8: g("s_waitcnt lgkmcnt(4)")
    stamp_at(3)
    g("s_waitcnt vmcnt(0) lgkmcnt(0)\ns_barrier")
    pA = 1
    winsA = [-15 + 2*i for i in range(16)]
    q = []
    NPF = env('NPF', 7)
    def rdA(kb):
        g(f"ds_read_b128 {vq(V_AOP + 4*(kb % 8))}, v{V_AR} offset:{32*kb}"); q.append(("A", kb))
    def rdW(W):
        g(f"ds_read_b128 {aq(win_areg(W, pA))}, v{V_UR} offset:{16*(W+15)}"); q.append(("W", W))
    fill = []
    for kb in range(NPF): rdA(kb)
    for kb in range(16):
        last = max(i for i, t in enumerate(q) if t == ("A", kb))
        n_after = len(q) - 1 - last
        g(f"s_waitcnt lgkmcnt({min(n_after, 15)})")
        cin = f"v[{V_KD}:{V_KD+15}]" if kb else "0"
        g(f"v_mfma_f32_32x32x16_bf16 v[{V_KD}:{V_KD+15}], {vq(V_AOP+4*(kb%8))}, {aq(4*kb)}, {cin}")
        if kb + NPF < 16: rdA(kb + NPF)
        if kb >= 4 or True:
            pass
    stamp_at(4)
    g("s_nop 7\ns_nop 3")
    D = V_KD
    S0, S1, S2, S8, S10, S11, T10, T11 = [V_S + i for i in range(8)]
    def shift(dst, cur, nxt):
        g(f"v_mov_b32_dpp v{dst}, v{nxt} wave_rol:1 row_mask:0xf bank_mask:0xf")
        g(f"v_mov_b32_dpp v{dst}, v{cur} wave_shl:1 row_mask:0xf bank_mask:0xf")
    def val(p, beta):
        if p == 0: return D+beta if beta <= 7 else [S0, S1, S2][beta-8]
        if p == 1: return D+8 if beta <= 2 else (D+9 if beta <= 5 else S8)
        v, S, T = (D+10, S10, T10) if p == 2 else (D+11, S11, T11)
        return v if beta <= 3 else (T if beta == 4 else S)
    NPRE = env('NPRE', 16)
    preA = []
    for s_ in range(1, 16, 2): preA += [-s_, 16 - s_]
    PRE_A.clear(); PRE_A.update(preA[:NPRE])
    def epi(m):
        shift(S0, D+0, D+8)
        if m == 1:
            shift(S1, D+1, D+8); shift(S2, D+2, D+8)
        nn = [0]
        def chunk(p, e):
            rho = 2*m + e
            c = V_CH + 4 * (nn[0] % 2); nn[0] += 1
            for d in range(4):
                g(f"v_cvt_pk_bf16_f32 v{c+d}, v{val(p, rho+7-2*d)}, v{val(p, rho+6-2*d)}")
            g(f"ds_write_b128 v{V_KW}, {vq(c)} offset:{e*CP1 + 1024*(3-p)}")
        chunk(0, 0); chunk(0, 1)
        g(f"s_mov_b64 exec, 15")
        Z = V_CH + 8
        g(f"v_mov_b32 v{Z+2}, 0\nv_mov_b32 v{Z+3}, 0\nv_mov_b32 v{Z+6}, 0\nv_mov_b32 v{Z+7}, 0")
        for e in (0, 1):
            rho = 2*m + e
            b_ = Z + 4*e
            def kv(i): return f"v{D+i}" if i >= 0 else "0"
            if rho == 0:
                g(f"v_mov_b32 v{b_}, 0\nv_mov_b32 v{b_+1}, 0")
            else:
                g(f"v_cvt_pk_bf16_f32 v{b_}, {kv(rho-1)}, {kv(rho-2)}")
                g(f"v_cvt_pk_bf16_f32 v{b_+1}, {kv(rho-3)}, {kv(rho-4)}")
                g(f"v_and_b32 v{b_}, v{V_ML0}, v{b_}")
                g(f"v_and_b32 v{b_+1}, v{V_ML0}, v{b_+1}")
            g(f"ds_write_b128 v{V_SP}, {vq(b_)} offset:{e*CP1+4096}")
        g(f"s_mov_b64 exec, -1")
        g("s_waitcnt lgkmcnt(0)\ns_barrier")
        shift(S8, D+8, D+10); shift(S10, D+10, D+11); shift(S11, D+11, D+12)
        g(f"v_bfi_b32 v{T10}, v{V_MODD}, v{S10}, v{D+10}")
        g(f"v_bfi_b32 v{T11}, v{V_MODD}, v{S11}, v{D+11}")
        wi = 0
        for p in range(1, 4):
            for e in (0, 1):
                chunk(p, e)
                NW = env('AWIN', 2)
                for _ in range(2):
                    if wi >= NPRE: break
                    W = preA[wi]; wi += 1
                    g(f"ds_read_b128 {aq(win_areg(W, pA))}, v{V_UR} offset:{16*(W+15)}")
                if wi == 8: g("s_waitcnt lgkmcnt(6)")
        if wi < NPRE:
            g("s_waitcnt lgkmcnt(8)")
            for W in preA[wi:NPRE]:
                g(f"ds_read_b128 {aq(win_areg(W, pA))}, v{V_UR} offset:{16*(W+15)}")
    g(f"s_cmp_eq_u32 s{S_M}, 0\ns_cbranch_scc0 L_epi1")
    epi(0)
    g("s_branch L_epi_done\nL_epi1:")
    epi(1)
    g("L_epi_done:")
    stamp_at(5)
    g("s_waitcnt lgkmcnt(0)\ns_barrier")
    stamp_at(6)
    conv(1, 0, [])
    g("s_branch L_fin" if stamps else "s_endpgm")
    g("L_roleB:")
    g(f"s_mov_b32 s{S_C256}, 0x43800000\ns_mov_b32 s{S_C256+1}, 0x43800000")
    for x in ot_lines([1, 3]): g(x)
    g(f"""
v_and_b32 v{V_T0}, 1, v{V_LANE}
v_bfe_u32 v{V_T1}, v{V_LANE}, 1, 3
v_lshlrev_b32 v{V_T1}, 2, v{V_T1}
s_cmp_eq_u32 s{S_M}, 0
s_cselect_b32 s{S_T2}, -3, 1
s_cselect_b32 s{S_T3}, 3, 1
v_mul_i32_i24 v{V_ACC+1}, s{S_T2}, v{V_T0}
v_add_u32 v{V_ACC+1}, s{S_T3}, v{V_ACC+1}
v_add_u32 v{V_T1}, v{V_T1}, v{V_ACC+1}
v_lshrrev_b32 v{V_T2}, 4, v{V_LANE}
v_lshlrev_b32 v{V_T2}, 3, v{V_T2}
v_sub_u32 v{V_DF}, v{V_T1}, v{V_T2}
""")
    dt_code(False, 11 if 'earlyu' in OPT else 7)
    g("s_waitcnt vmcnt(4)" if 'earlyu' in OPT else "s_waitcnt vmcnt(0)")
    stamp_at(2)
    if 'earlyu' not in OPT:
        uload(P_U, 0); uload(S_UT+2, 1)
    for M in (0, 1):
        unpack(MB(M)+R_AL, V_PAR, M); unpack(MB(M)+R_AL+1, V_PAR+1, M)
        unpack(MB(M)+R_B, V_PAR+2, M); unpack(MB(M)+R_B+1, V_PAR+3, M)
        unpack(MB(M)+R_CC, V_PAR+4, M); unpack(MB(M)+R_CC+1, V_PAR+5, M)
    both(lambda b: g(f"v_pk_mul_f32 {vp(b+R_AL)}, {vp(b+R_AL)}, {vp(V_DT)}"))
    both(lambda b: cmul(b+R_C, b+R_CC, b+R_B, b+R_T))
    both(lambda b: g(f"v_pk_mul_f32 {vp(b+R_C)}, {vp(b+R_C)}, {vp(V_DT+2)} neg_hi:[1,0]"))
    direct(R_Z1, R_AL)
    both(lambda b: g(f"v_pk_mul_f32 {vp(b+R_T)}, {vp(b+R_AL)}, {sp(S_C256)}"))
    direct(R_Z256, R_T)
    rowpos = {0:[0],1:[1],2:[2],3:[3],256:[4,5],258:[6],260:[7,12,13],4:[8],5:[9],6:[10],7:[11],262:[14],264:[15],
              512:[16],516:[17],1024:[18],1536:[19],768:[20],772:[21],1280:[22],1792:[23],2048:[24]}
    wcount[0] = 0
    twrite(R_C, rowpos[0])
    both(lambda b: cmul(b+R_Z2, b+R_Z1, b+R_Z1, b+R_T))
    both(lambda b: cmul(b+R_Z4, b+R_Z2, b+R_Z2, b+R_T))
    prev = R_C
    for r in range(1, 8):
        dst = {2:R_X2, 4:R_X4, 6:R_X6}.get(r, R_X)
        both(lambda b: cmul(b+dst, b+prev, b+R_Z1, b+R_T, conj=True))
        twrite(dst, rowpos[r])
        prev = dst
    uload_to(S_UT+4, V_U2)
    both(lambda b: cmul(b+R_E, b+R_C, b+R_Z256, b+R_T, conj=True))
    twrite(R_E, rowpos[256])
    for src, r in ((R_X2, 258), (R_X6, 262), (R_X4, 260)):
        both(lambda b: cmul(b+R_X, b+src, b+R_Z256, b+R_T, conj=True))
        twrite(R_X, rowpos[r])
    both(lambda b: cmul(b+R_X, b+R_X, b+R_Z4, b+R_T, conj=True))
    twrite(R_X, rowpos[264])
    for k in range(2, 9):
        both(lambda b: cmul(b+R_E, b+R_E, b+R_Z256, b+R_T, conj=True))
        twrite(R_E, rowpos[256*k])
        if k in (2, 3):
            both(lambda b: cmul(b+R_X, b+R_E, b+R_Z4, b+R_T, conj=True))
            twrite(R_X, rowpos[256*k+4])
    stamp_at(3)
    g("s_waitcnt lgkmcnt(0)\ns_barrier")
    g("s_waitcnt vmcnt(2)")
    stage(0, 0, V_PT); stage(1, 1, V_PT)
    uload(S_UT+6, 0)
    g(f"""
v_mov_b32 v{V_ACC}, 0
v_mov_b32 v{V_ACC+1}, 0
v_mov_b32 v{V_ACC+2}, 0
v_mov_b32 v{V_ACC+3}, 0
ds_write_b128 v{V_XW}, {vq(V_ACC)}
v_lshl_add_u32 v{V_T0}, v{V_DF}, 1, v{V_XW}
v_cmp_gt_u32 vcc, 8, v{V_DF}
s_and_saveexec_b64 s[{S_L0}:{S_L0+1}], vcc
ds_write_b16 v{V_T0}, v{V_DSK}
s_mov_b64 exec, s[{S_L0}:{S_L0+1}]
ds_read_b128 {vq(V_DF)}, v{V_XW}
""")
    stamp_at(4)
    g("s_waitcnt lgkmcnt(0)\ns_barrier")
    stamp_at(6)
    conv(0, 1, [])
    g("L_fin:")
    if stamps:
        g("s_waitcnt vmcnt(0)")
        stamp_at(11)
        g("s_memrealtime s[74:75]")
        g("s_waitcnt lgkmcnt(0)")
        g("s_load_dwordx2 s[14:15], s[0:1], 80")
        g("s_load_dwordx2 s[12:13], s[0:1], 88")
        g("s_waitcnt lgkmcnt(0)")
        g(f"s_lshl_b32 s11, s2, 3\ns_add_u32 s11, s11, s{S_W}\ns_lshl_b32 s11, s11, 7")
        g("s_add_u32 s12, s12, s11\ns_addc_u32 s13, s13, 0")
        g("s_mov_b64 exec, 1")
        g("v_mov_b32 v13, 0")
        for i in range(12):
            if i == 0: g("v_mov_b32 v14, s76")
            else: g(f"s_sub_u32 s66, s{76+2*i}, s76\nv_mov_b32 v14, s66")
            g(f"global_store_dword v13, v14, s[12:13] offset:{4*i}")
            g(f"s_cmp_eq_u32 s11, 0\ns_cbranch_scc0 L_nd{i}\nglobal_store_dword v13, v14, s[14:15] offset:{4*i}\nL_nd{i}:")
        g("s_sub_u32 s66, s98, s76\nv_mov_b32 v14, s66\nglobal_atomic_umax v13, v14, s[14:15] offset:48")
        g("s_sub_u32 s66, s80, s76\nv_mov_b32 v14, s66\nglobal_atomic_umax v13, v14, s[14:15] offset:52")
        g("v_mov_b32 v14, s74\nglobal_atomic_umax v13, v14, s[14:15] offset:56")
        g("s_not_b32 s66, s72\nv_mov_b32 v14, s66\nglobal_atomic_umax v13, v14, s[14:15] offset:60")
        g("v_mov_b32 v14, s72\nglobal_store_dword v13, v14, s[12:13] offset:120")
        g("v_mov_b32 v14, s74\nglobal_store_dword v13, v14, s[12:13] offset:124")
        g("s_waitcnt vmcnt(0)")
    g("L_end:\ns_endpgm")
    return g

HEADER = """; Kernarg layout (96 bytes): u, A_re, A_im, B_re, B_im, C_re, C_im, log_dt, Dskip, out, debug, ws (8 bytes each)
; @launch grid=(256,1,1) block=(512,1,1) lds=%d
.amdgcn_target "amdgcn-amd-amdhsa--gfx950"
.text
.globl standalone__ssm_conv_s4__prompt_kernel
.p2align 12
.fill 0x340, 4, 0xBF800000
.p2align 8
.type standalone__ssm_conv_s4__prompt_kernel,@function
standalone__ssm_conv_s4__prompt_kernel:
""" % LDS_TOTAL
def footer(ns): return """.section .rodata,"a"
.p2align 6
.amdhsa_kernel standalone__ssm_conv_s4__prompt_kernel
  .amdhsa_next_free_vgpr 256
  .amdhsa_next_free_sgpr %d
  .amdhsa_accum_offset 128
  .amdhsa_group_segment_fixed_size 0
  .amdhsa_kernarg_size 96
  .amdhsa_user_sgpr_count 2
  .amdhsa_user_sgpr_kernarg_segment_ptr 1
  .amdhsa_system_sgpr_workgroup_id_x 1
.end_amdhsa_kernel
""" % ns
def assemble_sizes(text):
    import subprocess, re, tempfile
    sys.path.insert(0, "cdna_kernels")
    open("_p.s", "w").write(text)
    r = subprocess.run(["clang", "-x", "assembler", "-target", "amdgcn-amd-amdhsa", "-mcpu=gfx950", "-c", "_p.s", "-o", "_p.o"], capture_output=True, text=True)
    assert r.returncode == 0, r.stderr
    d = subprocess.run(["llvm-objdump", "-d", "--mcpu=gfx950", "_p.o"], capture_output=True, text=True).stdout
    addrs = []
    started = False
    for ln in d.split("\n"):
        if "<standalone__ssm_conv_s4__prompt_kernel>:" in ln: started = True; continue
        if not started: continue
        m = re.search(r"// ([0-9A-F]{12}):", ln)
        if m: addrs.append(int(m.group(1), 16))
    return addrs

if __name__ == "__main__":
    out = sys.argv[1]
    st = len(sys.argv) > 2 and sys.argv[2] == "stamps"
    g = gen(st)
    def isinstr(l): return not (l.endswith(":") or l.startswith(".") or l.startswith(";"))
    for pg in (1, 2):
        tmp = G(); tmp.L = list(g.L)
        have = [l for l in tmp.L if l.startswith("L_pg") and l.endswith(":")]
        for k in (1, 2):
            if f"L_pg{k}:" not in have: tmp.L.append(f"L_pg{k}:"); tmp.L.append("s_endpgm")
        addrs = assemble_sizes(HEADER + tmp.text() + footer(102 if st else 72))
        base = addrs[0]
        idx = [i for i, l in enumerate(g.L) if isinstr(l)]
        pos = None
        for n, i in enumerate(idx):
            if addrs[n] - base >= pg * 4096:
                pos = i; break
        if pos is None:
            g.L += [f"L_pg{pg}:", "s_cbranch_execz L_back", "s_endpgm"]
        else:
            g.L[pos:pos] = [f"L_pg{pg}:", "s_cbranch_execz L_back"]
    open(out, "w").write(HEADER + g.text() + footer(102 if st else 72))
    print("LDS", LDS_TOTAL, "lines", len(g.L))
```

```python
import sys, os
OPT = os.environ.get('OPT', '').split(',')
def env(n, d): return int(os.environ.get(n, d))

class G:
    def __init__(self): self.L = []
    def __call__(self, s):
        for ln in s.strip("\n").split("\n"):
            ln = ln.strip()
            if ln: self.L.append(ln)
    def text(self):
        out = []
        for l in self.L:
            out.append(l if (l.endswith(":") or l.startswith(".") or l.startswith(";")) else "    " + l)
        return "\n".join(out) + "\n"

def vp(i): return f"v[{i}:{i+1}]"
def vq(i): return f"v[{i}:{i+3}]"
def aq(i): return f"a[{i}:{i+3}]"
def sp(i): return f"s[{i}:{i+1}]"

RS = 528; NA = 25; WR = 30208
UB = 4 * WR; UCH = 5120; UH = 1280
XB = UB + 4 * UCH
LDS_TOTAL = XB + 16384
CP1 = 4224

S_W, S_XCD, S_IDX, S_M, S_D0, S_D, S_C, S_R = 3, 4, 5, 6, 7, 8, 9, 10
P_U, P_ARE, P_AIM, P_BRE, P_BIM, P_CRE, P_CIM, P_LDT = 16, 18, 20, 22, 24, 26, 28, 30
P_DSK, P_OUT = 32, 34
S_LDT, S_DSK = 36, 38
S_C256, S_LC = 42, 44
S_PLO, S_PHI = 46, 47
S_ODD = 48
S_L0 = 40
S_UT = 50
S_OT = 58
S_T0, S_T1, S_T2, S_T3 = 66, 67, 68, 69
S_WB = 70
S_D02 = 71

V_LANE = 1
V_TW, V_AR, V_BR, V_KW, V_KR, V_UR, V_US, V_UG, V_XW, V_XR, V_OG = 2, 3, 4, 5, 6, 7, 8, 9, 10, 11, 12
V_T0, V_T1, V_T2 = 13, 14, 15
V_UST = 16
V_DF = 24
V_DT = 28
V_ACC = 32
V_MB = 48
MSZ = 30
def MB(M): return V_MB + MSZ * M
R_AL, R_C, R_Z1, R_Z2, R_Z4, R_Z256, R_T, R_X, R_E, R_X2, R_X4, R_X6, R_B, R_CC, R_M = [2*i for i in range(15)]
R_Z8, R_Y = R_Z1, R_X
V_DW = 112
V_KD = 112
V_AOP = 48
V_S = 80
V_CH = 88
V_RK = 88
V_RW = 48
V_XO = 104
V_PT = 120
V_PO = 123
V_U2 = 124
V_SP = 24
V_MODD = 25
V_ML0 = 26
V_PAR = 106
V_LDT = 122
V_DSK = 121

PRE_A = set()
def gen(stamps=False):
    g = G()
    def stamp_raw(i):
        if stamps: g(f"s_memtime s[{76+2*i}:{77+2*i}]")
    def stamp_at(i):
        if 'convprof' in OPT:
            if i == 6: stamp_raw(0)
            if i == 11: stamp_raw(11)
            return
        stamp_raw(i)
    def common_early():
        g(f"""
v_lshrrev_b32 v{V_UG}, 2, v{V_LANE}
v_lshlrev_b32 v{V_UG}, 5, v{V_UG}
v_and_b32 v{V_T2}, 3, v{V_LANE}
v_lshl_add_u32 v{V_UG}, v{V_T2}, 1, v{V_UG}
s_lshl_b32 s{S_T0}, s{S_C}, 3
v_add_u32 v{V_UG}, s{S_T0}, v{V_UG}
v_lshlrev_b32 v{V_UG}, 10, v{V_UG}
v_add_u32 v{V_UG}, s{S_D02}, v{V_UG}
v_lshlrev_b32 v{V_TW}, 3, v{V_LANE}
v_add_u32 v{V_TW}, s{S_WB}, v{V_TW}
s_mov_b32 s{S_LC}, 0x3fb8aa3b
s_mov_b32 s{S_LC+1}, 0x3e22f983
""")
    def unpack(dst, src, M):
        if M == 0: g(f"v_lshlrev_b32 v{dst}, 16, v{src}")
        else: g(f"v_and_b32 v{dst}, 0xffff0000, v{src}")

    def uload(base, slot):
        g(f"global_load_dwordx2 {vp(V_UST+4*slot)}, v{V_UG}, {sp(base)}")
        g(f"global_load_dwordx2 {vp(V_UST+4*slot+2)}, v{V_UG}, {sp(base)} offset:1024")
    def uload_to(base, reg):
        g(f"global_load_dwordx2 {vp(reg)}, v{V_UG}, {sp(base)}")
        g(f"global_load_dwordx2 {vp(reg+2)}, v{V_UG}, {sp(base)} offset:1024")
    def stage_txt(t, slot, tmp4):
        b = V_UST + 4*slot if slot < 8 else slot
        L = [f"v_perm_b32 v{V_T0}, v{b+2}, v{b}, s{S_PLO}",
             f"v_perm_b32 v{V_T1}, v{b+2}, v{b}, s{S_PHI}",
             f"v_perm_b32 v{V_T2}, v{b+3}, v{b+1}, s{S_PLO}",
             f"v_perm_b32 v{tmp4}, v{b+3}, v{b+1}, s{S_PHI}"]
        W = [f"ds_write_b32 v{V_US}, v{r} offset:{UCH*c + 256*t}" for c, r in enumerate((V_T0, V_T1, V_T2, tmp4))]
        return L, W
    def stage(t, slot, tmp4):
        L, W = stage_txt(t, slot, tmp4)
        for x in L + W: g(x)
    def us_addr():
        g(f"""
s_mul_i32 s{S_T0}, s{S_C}, {UH}
s_add_u32 s{S_T0}, s{S_T0}, {UB + 240}
v_lshlrev_b32 v{V_US}, 2, v{V_LANE}
v_add_u32 v{V_US}, s{S_T0}, v{V_US}
s_mov_b32 s{S_PLO}, 0x05040100
s_mov_b32 s{S_PHI}, 0x07060302
""")
    def dt_code(scale8, n_after):
        g(f"""
s_waitcnt vmcnt({n_after})
v_lshlrev_b32 v{V_LDT}, 16, v{V_LDT}
v_mov_b32 v{V_T0}, s{S_LC}
v_mul_f32 v{V_T1}, v{V_LDT}, v{V_T0}
v_fma_f32 v{V_T2}, v{V_LDT}, v{V_T0}, -v{V_T1}
v_mov_b32 v{V_T0}, 0x32a57060
v_fma_f32 v{V_T2}, v{V_LDT}, v{V_T0}, v{V_T2}
v_exp_f32 v{V_T1}, v{V_T1}
v_mul_f32 v{V_T2}, 0x3f317218, v{V_T2}
v_fma_f32 v{V_T1}, v{V_T1}, v{V_T2}, v{V_T1}
v_cvt_pk_bf16_f32 v{V_T1}, v{V_T1}, v{V_T1}
v_lshlrev_b32 v{V_DT+2}, 16, v{V_T1}
""")
        if scale8:
            g(f"v_mul_f32 v{V_DT+2}, 0x41000000, v{V_DT+2}")
        g(f"v_mov_b32 v{V_DT+3}, v{V_DT+2}")
        g(f"v_pk_mul_f32 {vp(V_DT)}, {vp(V_DT+2)}, {sp(S_LC)}")
    def cmul(dst, a, bb, tmp, conj=False):
        g(f"v_pk_mul_f32 {vp(tmp)}, {vp(a)}, {vp(bb)} op_sel_hi:[1,0]")
        neg = "neg_hi:[0,1,0]" if conj else "neg_lo:[0,1,0]"
        g(f"v_pk_fma_f32 {vp(dst)}, {vp(a)}, {vp(bb)}, {vp(tmp)} op_sel:[1,1,0] op_sel_hi:[0,1,1] {neg}")
    def both(f):
        for M in (0, 1): f(MB(M))
    def direct(dst, arg):
        both(lambda b: g(f"v_exp_f32 v{b+R_M}, v{b+arg}"))
        both(lambda b: g(f"v_fract_f32 v{b+R_M+1}, v{b+arg+1}"))
        both(lambda b: g(f"v_cos_f32 v{b+dst}, v{b+R_M+1}"))
        both(lambda b: g(f"v_sin_f32 v{b+dst+1}, v{b+R_M+1}"))
        g("s_nop 0")
        both(lambda b: g(f"v_pk_mul_f32 {vp(b+dst)}, {vp(b+dst)}, {vp(b+R_M)} op_sel_hi:[1,0]"))
    wcount = [0]
    def twrite(src_off, positions):
        p = V_DW + 2 * (wcount[0] % 4); wcount[0] += 1
        for M in (0, 1):
            b = MB(M)
            g(f"v_cvt_pk_bf16_f32 v{p+M}, v{b+src_off}, v{b+src_off+1}")
        for pos in positions:
            g(f"ds_write_b64 v{V_TW}, {vp(p)} offset:{pos*RS}")
    def kr_lines():
        return f"""
v_and_b32 v{V_T0}, 1, v{V_LANE}
v_bfe_u32 v{V_T1}, v{V_LANE}, 1, 3
s_xor_b32 s{S_T0}, s{S_M}, 1
v_xor_b32 v{V_T2}, 1, v{V_T0}
v_and_b32 v{V_T2}, s{S_T0}, v{V_T2}
v_add_u32 v{V_T2}, v{V_T1}, v{V_T2}
v_lshlrev_b32 v{V_T2}, 3, v{V_T2}
v_mul_u32_u24 v{V_KR}, {CP1}, v{V_T0}
v_sub_u32 v{V_KR}, v{V_KR}, v{V_T2}
v_lshrrev_b32 v{V_T2}, 4, v{V_LANE}
v_lshlrev_b32 v{V_T2}, 4, v{V_T2}
v_add_u32 v{V_KR}, v{V_KR}, v{V_T2}
s_add_u32 s{S_T0}, s{S_WB}, 64
v_add_u32 v{V_KR}, s{S_T0}, v{V_KR}
""".strip().split("\n")
    def ur_lines():
        return f"""
v_lshrrev_b32 v{V_T1}, 4, v{V_LANE}
v_mul_u32_u24 v{V_T1}, {UH}, v{V_T1}
v_and_b32 v{V_T0}, 15, v{V_LANE}
v_lshlrev_b32 v{V_T2}, 4, v{V_T0}
v_add_u32 v{V_UR}, v{V_T1}, v{V_T2}
s_mul_i32 s{S_T0}, s{S_C}, {UCH}
s_add_u32 s{S_T0}, s{S_T0}, {UB}
v_add_u32 v{V_UR}, s{S_T0}, v{V_UR}
""".strip().split("\n")
    def x_lines(role):
        return f"""
v_lshlrev_b32 v{V_T1}, 4, v{V_LANE}
s_lshl_b32 s{S_T0}, s{S_C}, 11
s_add_u32 s{S_T0}, s{S_T0}, {XB + 1024*role}
v_add_u32 v{V_XW}, s{S_T0}, v{V_T1}
v_and_b32 v{V_T0}, 7, v{V_LANE}
v_lshrrev_b32 v{V_T1}, 5, v{V_LANE}
v_lshl_add_u32 v{V_T0}, v{V_T1}, 3, v{V_T0}
v_bfe_u32 v{V_T1}, v{V_LANE}, 3, 2
v_lshlrev_b32 v{V_XR}, 4, v{V_T0}
v_lshl_add_u32 v{V_XR}, v{V_T1}, 2, v{V_XR}
s_lshl_b32 s{S_T0}, s{S_C}, 8
s_add_u32 s{S_T0}, s{S_T0}, {XB}
v_add_u32 v{V_XR}, s{S_T0}, v{V_XR}
v_lshlrev_b32 v{V_OG}, 5, v{V_T0}
v_lshrrev_b32 v{V_T2}, 1, v{V_T1}
v_lshl_add_u32 v{V_OG}, v{V_T2}, 2, v{V_OG}
v_and_b32 v{V_T1}, 1, v{V_T1}
s_cmp_eq_u32 s{S_M}, 0
s_cselect_b32 s{S_T2}, -3, 1
s_cselect_b32 s{S_T3}, 3, 1
v_mul_i32_i24 v{V_T1}, s{S_T2}, v{V_T1}
v_add_u32 v{V_T1}, s{S_T3}, v{V_T1}
v_add_u32 v{V_OG}, v{V_OG}, v{V_T1}
s_lshl_b32 s{S_T0}, s{S_C}, 3
v_add_u32 v{V_OG}, s{S_T0}, v{V_OG}
v_lshlrev_b32 v{V_OG}, 10, v{V_OG}
v_add_u32 v{V_OG}, s{S_D02}, v{V_OG}
""".strip().split("\n")
    def ot_lines(tiles):
        L = []
        for i, t in enumerate(tiles):
            L += [f"s_add_u32 s{S_OT+2*i}, s{P_OUT}, {t*0x80000}", f"s_addc_u32 s{S_OT+2*i+1}, s{P_OUT+1}, 0"]
        return L

    if stamps: g("s_memrealtime s[72:73]")
    stamp_at(0)
    g(f"""
s_cmp_ge_u32 s2, 256
s_cbranch_scc1 L_end
s_load_dwordx16 s[16:31], s[0:1], 0
s_load_dwordx4 s[32:35], s[0:1], 64
v_lshrrev_b32 v{V_T0}, 6, v0
v_and_b32 v{V_LANE}, 63, v0
v_readfirstlane_b32 s{S_W}, v{V_T0}
s_and_b32 s{S_XCD}, s2, 7
s_lshr_b32 s{S_IDX}, s2, 3
s_and_b32 s{S_M}, s{S_IDX}, 1
s_lshr_b32 s{S_T0}, s{S_IDX}, 1
s_lshl_b32 s{S_T0}, s{S_T0}, 2
s_lshl_b32 s{S_D0}, s{S_XCD}, 6
s_add_u32 s{S_D0}, s{S_D0}, s{S_T0}
s_and_b32 s{S_C}, s{S_W}, 3
s_lshr_b32 s{S_R}, s{S_W}, 2
s_add_u32 s{S_D}, s{S_D0}, s{S_C}
s_lshl_b32 s{S_D02}, s{S_D0}, 1
s_mul_i32 s{S_WB}, s{S_C}, {WR}
s_lshl_b32 s{S_T0}, s{S_D}, 8
v_lshlrev_b32 v{V_PO}, 2, v{V_LANE}
v_add_u32 v{V_PO}, s{S_T0}, v{V_PO}
v_mov_b32 v{V_UG}, 0
v_mov_b32 v{V_OG}, 0
s_cmp_eq_u32 s{S_R}, 0
s_cbranch_scc1 L_wait
""")
    common_early(); us_addr()
    for x in kr_lines() + ur_lines() + x_lines(1): g(x)
    g(f"""
L_wait:
s_lshl_b32 s{S_T0}, s{S_D}, 1
v_mov_b32 v{V_T0}, s{S_T0}
s_cmp_eq_u32 s{S_R}, 0
s_waitcnt lgkmcnt(0)
""")
    stamp_at(1)
    g(f"global_load_ushort v{V_LDT}, v{V_T0}, {sp(P_LDT)}")
    g(f"global_load_dword v{V_PAR}, v{V_PO}, {sp(P_ARE)}")
    g(f"global_load_dword v{V_PAR+1}, v{V_PO}, {sp(P_AIM)}")
    g("s_cbranch_scc1 L_skipB")
    for i, p in enumerate([P_BRE, P_BIM, P_CRE, P_CIM]):
        g(f"global_load_dword v{V_PAR+2+i}, v{V_PO}, {sp(p)}")
    if 'latedsk' not in OPT: g(f"global_load_ushort v{V_DSK}, v{V_T0}, {sp(P_DSK)}")
    else: g(f"v_mov_b32 v{V_DSK}, v{V_T0}")
    g("s_barrier")
    for t in (1, 2, 3):
        g(f"s_add_u32 s{S_UT+2*t}, s{P_U}, {t*0x80000}\ns_addc_u32 s{S_UT+2*t+1}, s{P_U+1}, 0")
    if 'earlyu' in OPT: uload(P_U, 0); uload(S_UT+2, 1)
    g(f"""
s_mov_b64 exec, 0
s_cmp_eq_u32 s{S_W}, 4
s_cbranch_scc1 L_pg1
s_cmp_eq_u32 s{S_W}, 5
s_cbranch_scc1 L_pg2
L_back:
s_mov_b64 exec, -1
s_branch L_roleB
L_skipB:
""")
    if 'warm' in OPT:
        g(f"v_mov_b32 v{V_T0}, 0")
        g(f"global_load_dword v{V_PAR+3}, v{V_T0}, {sp(P_OUT)}")
    g("s_barrier")

    def win_areg(W, p): return 64 + 4 * ((W + 15 - (1 - p)) // 2)
    def conv(p, role, extra):
        par = lambda lo, hi: [x for x in range(lo, hi) if x % 2 == p]
        M_ = lambda t, sig: ("m", t, sig, 16*t - sig)
        D_ = lambda t: ("d", t, None, 16*t)
        jobs = []; done_at = {}
        if role == 1 and 'late1' in OPT:
            for s_ in par(0, 16):
                jobs.append(M_(0, s_))
                if p == 0 and s_ == 0: jobs.append(D_(0))
            for s_ in par(0, 16): jobs.append(M_(1, s_))
        else:
            for s_ in par(0, 16):
                jobs += [M_(0, s_), M_(1, s_)]
                if p == 0 and s_ == 0: jobs.append(D_(0))
        done_at[0] = max(i for i, j in enumerate(jobs) if j[1] == 0)
        for s_ in par(16, 32):
            jobs += [M_(1, s_), M_(2, s_)]
            if p == 0 and s_ == 16: jobs.append(D_(1))
        done_at[1] = max(i for i, j in enumerate(jobs) if j[1] == 1)
        for s_ in par(32, 48): jobs += [M_(2, s_), M_(3, s_)]
        for W in par(17, 33):
            jobs += [M_(2, 32 - W), M_(3, 48 - W)]
            if p == 0 and W == 32: jobs.append(D_(2))
        done_at[2] = max(i for i, j in enumerate(jobs) if j[1] == 2)
        a_ = par(48, 64); b_ = par(33, 49)
        for i in range(8):
            jobs.append(M_(3, a_[i])); jobs.append(M_(3, 48 - b_[i]))
        if p == 0: jobs.append(D_(3))
        done_at[3] = len(jobs) - 1
        N = len(jobs)
        def kreg(sig):
            if sig < 32: return aq(4 * (sig // 2))
            return vq(V_RK + 4 * (((sig - 32) // 2) % 4))
        def kreg_lo(sig):
            if sig < 32: return f"a[{4*(sig//2)}:{4*(sig//2)+1}]", f"a[{4*(sig//2)+2}:{4*(sig//2)+3}]"
            bb = V_RK + 4 * (((sig - 32) // 2) % 4)
            return vp(bb), vp(bb + 2)
        def wreg(W):
            if W <= 16: return aq(win_areg(W, p))
            return vq(V_RW + 4 * (((W - 17) // 2) % 4))
        gaps = {i: [] for i in range(-1, N)}
        nlds = {i: 0 for i in range(-1, N)}
        DA, DB, DR, DS = env('DA', 3), env('DB', 7), env('DR', 0), env('DS', 6)
        barpos = {}
        orig = {}
        def put(i, op, lds=False):
            orig[op] = i
            i = min(i, N - 1)
            gaps[i].append(op)
            if lds: nlds[i] += 1
            return i
        for t in range(4):
            j = done_at[t]
            put(j + DA, ("xw", t), True)
            bp = put(j + DB, ("bar", t))
            barpos[t] = bp
            if (t & 1) == role:
                if role == 1:
                    put(j + DB, ("rdout", t))
                else:
                    for k in range(4): put(bp + DR + k, ("xr", t, k), True)
                    put(bp + DR + DS, ("xa", t, 0)); put(bp + DR + DS + 1, ("xa", t, 1)); put(bp + DR + DS + 2, ("xa", t, 2)); put(bp + DR + DS + 3, ("st", t))
            if role == 1 and t == 0:
                put(j + DB, ("stage", 3))
        B2B = env('B2B', 6 if 'late1' in OPT else 12)
        if role == 1:
            if 'late1' in OPT: put(B2B - env('ST1', 3), ("stage", 1))
            put(B2B, ("b2b",)); put(B2B + env('ST2', 2), ("stage", 2))
        first = {}; last = {}
        for i, j in enumerate(jobs):
            keys = [("w", j[3])] + ([("k", j[2])] if j[0] == "m" else [])
            for k in keys:
                first.setdefault(k, i); last[k] = i
        reads = []
        for k, i in sorted(first.items(), key=lambda x: x[1]):
            if k[0] == "w":
                if k[1] <= 16:
                    if role == 0 and k[1] in PRE_A: continue
                    reads.append((i, (B2B if ('late1' in OPT and k[1] > 0 and role == 1) else -1), ("w", k[1]))); continue
                rel = barpos[0] if k[1] <= 32 else barpos[1]
                if k[1] - 8 >= 17: rel = max(rel, last[("w", k[1] - 8)])
                reads.append((i, rel, ("w", k[1])))
            else:
                rel = -1
                if role == 1 and k[1] >= 16: rel = B2B
                if k[1] >= 40: rel = max(rel, last[("k", k[1] - 8)])
                reads.append((i, rel, ("k", k[1], 0))); reads.append((i, rel, ("k", k[1], 1)))
        LMAX, LMIN, INIT = env('LMAX', 14), env('LMIN', 5), env('INIT', 10)
        pos = -1; ninit = 0
        for (d, rel, key) in reads:
            g0 = max(rel, d - LMAX, pos)
            if g0 <= -1 and ninit < INIT:
                i = -1; ninit += 1
            else:
                i = max(g0, 0)
                while nlds[i] >= 1 and i < d - LMIN: i += 1
                i = min(i, d - env('GRP', 1) - (d % env('GRP', 1)) if env('GRP', 1) > 1 else d - 1)
                i = max(i, rel)
            gaps[i].append(("rd", key)); nlds[i] += 1; pos = i
        q = []; st = {"waited": 0}
        def room(n):
            out = len(q) - st["waited"]
            if out + n > 15:
                keep = 15 - n
                g(f"s_waitcnt lgkmcnt({keep})"); st["waited"] = len(q) - keep
        def need(tags):
            lastq = -1
            for i, tg in enumerate(q):
                if tg in tags: lastq = i
            if lastq >= st["waited"]:
                g(f"s_waitcnt lgkmcnt({len(q)-1-lastq})"); st["waited"] = lastq + 1
        lastacc = {}; inited = set()
        def emit(op):
            k = op[0]
            if k == "rd":
                key = op[1]; room(1)
                if key[0] == "w":
                    g(f"ds_read_b128 {wreg(key[1])}, v{V_UR} offset:{16*(key[1]+15)}"); q.append(("w", key[1]))
                else:
                    lo, hi = kreg_lo(key[1])
                    g(f"ds_read_b64 {lo if key[2] == 0 else hi}, v{V_KR} offset:{64*(63-key[1]) + 8*key[2]}"); q.append(("k", key[1]))
            elif k == "xw":
                t = op[1]
                gap = len(g.L) - lastacc[t]
                if gap < 8: g(f"s_nop {8 - gap - 1}")
                room(1)
                g(f"ds_write_b128 v{V_XW}, {vq(V_ACC+4*t)} offset:{8192*(t&1)}"); q.append(("x", t))
            elif k == "stv":
                t = op[1]
                g(f"s_waitcnt vmcnt({2 if t == 0 else 0})")
                L, Wr = stage_txt(2, V_U2, V_PT) if t == 0 else stage_txt(3, 0, V_PT)
                for x in L: g(x)
            elif k == "stw":
                t, c = op[1], op[2]
                L, Wr = stage_txt(2, V_U2, V_PT) if t == 0 else stage_txt(3, 0, V_PT)
                room(1); g(Wr[c]); q.append(("x", t))
            elif k == "stage":
                t = op[1]
                if t == 1:
                    g("s_waitcnt vmcnt(4)")
                    L, Wr = stage_txt(1, 1, V_PT)
                else:
                    g(f"s_waitcnt vmcnt({2 if t == 2 else 0})")
                    L, Wr = stage_txt(2, V_U2, V_PT) if t == 2 else stage_txt(3, 0, V_PT)
                for x in L: g(x)
                room(4)
                for x in Wr:
                    g(x); q.append(("s1",) if t == 1 else ("x", t - 2))
            elif k == "rdout":
                t = op[1]
                for c in range(4): emit(("xr", t, c))
                for c in range(3): emit(("xa", t, c))
                emit(("st", t))
            elif k == "b2b":
                need({("s1",)}); g("s_barrier")
            elif k == "bar":
                need({("x", op[1])}); g("s_barrier")
            elif k == "xr":
                t, c = op[1], op[2]; room(1)
                g(f"ds_read2st64_b32 {vp(V_XO+2*c)}, v{V_XR} offset0:{8*c+32*(t&1)} offset1:{8*c+4+32*(t&1)}"); q.append(("y", t))
            elif k == "xa":
                t, c = op[1], op[2]
                if c == 0:
                    need({("y", t)})
                    g(f"v_add_f32 v{V_XO}, v{V_XO}, v{V_XO+1}\nv_add_f32 v{V_XO+2}, v{V_XO+2}, v{V_XO+3}")
                elif c == 1:
                    g(f"v_add_f32 v{V_XO+4}, v{V_XO+4}, v{V_XO+5}\nv_add_f32 v{V_XO+6}, v{V_XO+6}, v{V_XO+7}")
                else:
                    g(f"v_cvt_pk_bf16_f32 v{V_XO}, v{V_XO}, v{V_XO+2}\nv_cvt_pk_bf16_f32 v{V_XO+1}, v{V_XO+4}, v{V_XO+6}")
            elif k == "st":
                t = op[1]
                g(f"global_store_dwordx2 v{V_OG}, {vp(V_XO)}, {sp(S_OT+2*(t>>1))}")
                if 'nocs' not in OPT or t == 3 - (1 - role): stamp_at(10)
        order = {"xw": 0, "stv": 1, "stw": 2, "bar": 3, "b2b": 3, "rdout": 3.5, "stage": 3.7, "xr": 4, "rd": 5, "xa": 6, "st": 7}
        GRP = env('GRP', 1)
        PM = env('PAM', -1) if role == 0 else env('PBM', -1)
        PO = env('PAO', -1) if role == 0 else env('PBO', -1)
        if PO >= 0: g(f"s_setprio {PO}")
        for op in sorted(gaps[-1], key=lambda o: 0 if o[0] == 'rd' else 1): emit(op)
        pending = []
        for i, j in enumerate(jobs):
            first_in_grp = (i % GRP == 0)
            last_in_grp = (i % GRP == GRP - 1) or i == N - 1
            if first_in_grp:
                alltags = set()
                for jj in jobs[i:i + GRP]:
                    if jj[0] == "m": alltags.add(("k", jj[2]))
                    if jj[3] > 16 or role == 1 or jj[3] not in PRE_A: alltags.add(("w", jj[3]))
                for op in list(pending):
                    pass
                need(alltags)
                if PM >= 0: g(f"s_setprio {PM}")
            tags = set()
            if j[0] == "m": tags.add(("k", j[2]))
            if j[3] > 16 or role == 1 or j[3] not in PRE_A: tags.add(("w", j[3]))
            for tg in tags: assert tg in q, (p, i, j, tg)
            need(tags)
            t = j[1]; acc = vq(V_ACC + 4*t)
            cin = acc if t in inited else "0"
            inited.add(t)
            A = kreg(j[2]) if j[0] == "m" else vq(V_DF)
            g(f"v_mfma_f32_16x16x32_bf16 {acc}, {A}, {wreg(j[3])}, {cin}")
            lastacc[t] = len(g.L)
            if 'convprof' in OPT and (i + 1) % 8 == 0: stamp_raw((i + 1) // 8)
            ops = gaps[i]
            if i < N - 1: ops = sorted(ops, key=lambda o: order[o[0]])
            else:
                ops = sorted(ops, key=lambda o: (orig.get(o, N - 1), order[o[0]]))
            pending += ops
            if last_in_grp:
                if PM >= 0: g(f"s_setprio {PO}")
                for op in pending: emit(op)
                pending = []

    g(f"""
v_and_b32 v{V_T0}, 15, v{V_LANE}
s_lshl_b32 s{S_T0}, s{S_IDX}, 6
s_lshl_b32 s{S_T2}, s{S_C}, 4
s_add_u32 s{S_T0}, s{S_T0}, s{S_T2}
v_add_u32 v{V_T2}, s{S_T0}, v{V_T0}
v_lshlrev_b32 v{V_T2}, 10, v{V_T2}
s_lshl_b32 s{S_T0}, s{S_XCD}, 7
v_add_u32 v{V_T2}, s{S_T0}, v{V_T2}
v_mov_b32 v{V_UST+6}, v{V_T2}
""")
    if 'latepf' not in OPT: g(f"global_load_dword v{V_UST+7}, v{V_UST+6}, {sp(P_U)}")
    g(f"""
v_lshlrev_b32 v{V_TW}, 3, v{V_LANE}
v_add_u32 v{V_TW}, s{S_WB}, v{V_TW}
s_mov_b32 s{S_LC}, 0x3fb8aa3b
s_mov_b32 s{S_LC+1}, 0x3e22f983
""")
    for x in kr_lines() + ur_lines(): g(x)
    g(f"""
v_and_b32 v{V_T0}, 31, v{V_LANE}
v_lshrrev_b32 v{V_T1}, 5, v{V_LANE}
v_lshlrev_b32 v{V_T1}, 4, v{V_T1}
v_add_u32 v{V_T1}, s{S_WB}, v{V_T1}
v_min_u32 v{V_T2}, 24, v{V_T0}
v_mul_u32_u24 v{V_T2}, {RS}, v{V_T2}
v_add_u32 v{V_AR}, v{V_T1}, v{V_T2}
v_mul_u32_u24 v{V_T2}, {RS}, v{V_T0}
v_add_u32 v{V_BR}, v{V_T1}, v{V_T2}
v_add_u32 v{V_BR}, {NA*RS}, v{V_BR}
v_lshlrev_b32 v{V_T0}, 4, v{V_LANE}
s_add_u32 s{S_T0}, s{S_WB}, 1008
v_sub_u32 v{V_KW}, s{S_T0}, v{V_T0}
v_add_u32 v{V_SP}, s{S_WB}, v{V_T0}
v_and_b32 v{V_MODD}, 1, v{V_LANE}
v_sub_u32 v{V_MODD}, 0, v{V_MODD}
v_min_u32 v{V_ML0}, 1, v{V_LANE}
v_add_u32 v{V_ML0}, -1, v{V_ML0}
""")
    for x in x_lines(0) + ot_lines([0, 2]): g(x)
    g(f"""
v_lshrrev_b32 v{V_T1}, 4, v{V_LANE}
v_mul_u32_u24 v{V_T1}, {UCH}, v{V_T1}
v_and_b32 v{V_T0}, 15, v{V_LANE}
v_lshl_add_u32 v{V_T1}, v{V_T0}, 4, v{V_T1}
s_mul_i32 s{S_T0}, s{S_C}, {UH}
s_add_u32 s{S_T0}, s{S_T0}, {UB}
v_add_u32 v{V_T1}, s{S_T0}, v{V_T1}
v_mov_b32 v{V_ACC}, 0
v_mov_b32 v{V_ACC+1}, 0
v_mov_b32 v{V_ACC+2}, 0
v_mov_b32 v{V_ACC+3}, 0
s_mov_b32 exec_lo, 0x7fff7fff
s_mov_b32 exec_hi, 0x7fff7fff
ds_write_b128 v{V_T1}, {vq(V_ACC)}
s_mov_b64 exec, -1
""")
    if 'latepf' in OPT: g(f"global_load_dword v{V_UST+7}, v{V_UST+6}, {sp(P_U)}")
    dt_code(True, 4 if 'warm' in OPT else 3)
    g("s_waitcnt vmcnt(2)" if 'warm' in OPT else "s_waitcnt vmcnt(1)")
    stamp_at(2)
    for M in (0, 1):
        unpack(MB(M)+R_AL, V_PAR, M); unpack(MB(M)+R_AL+1, V_PAR+1, M)
    both(lambda b: g(f"v_pk_mul_f32 {vp(b+R_AL)}, {vp(b+R_AL)}, {vp(V_DT)}"))
    direct(R_Z8, R_AL)
    g(f"v_mov_b32 v{V_DW}, 0x00003f80\nv_mov_b32 v{V_DW+1}, 0x00003f80")
    g(f"ds_write_b64 v{V_TW}, {vp(V_DW)} offset:{NA*RS}")
    wcount[0] = 1
    twrite(R_Z8, [NA+1])
    both(lambda b: cmul(b+R_Y, b+R_Z8, b+R_Z8, b+R_T))
    twrite(R_Y, [NA+2])
    for j in range(3, 32):
        both(lambda b: cmul(b+R_Y, b+R_Y, b+R_Z8, b+R_T))
        twrite(R_Y, [NA+j])
    for kb in range(16):
        g(f"ds_read_b128 {aq(4*kb)}, v{V_BR} offset:{32*kb}")
        if kb == 8: g("s_waitcnt lgkmcnt(4)")
    stamp_at(3)
    g("s_waitcnt vmcnt(0) lgkmcnt(0)\ns_barrier")
    pA = 1
    winsA = [-15 + 2*i for i in range(16)]
    q = []
    NPF = env('NPF', 7)
    def rdA(kb):
        g(f"ds_read_b128 {vq(V_AOP + 4*(kb % 8))}, v{V_AR} offset:{32*kb}"); q.append(("A", kb))
    def rdW(W):
        g(f"ds_read_b128 {aq(win_areg(W, pA))}, v{V_UR} offset:{16*(W+15)}"); q.append(("W", W))
    fill = []
    if 'prioK' in OPT: g("s_setprio 2")
    for kb in range(NPF): rdA(kb)
    for kb in range(16):
        last = max(i for i, t in enumerate(q) if t == ("A", kb))
        n_after = len(q) - 1 - last
        g(f"s_waitcnt lgkmcnt({min(n_after, 15)})")
        cin = f"v[{V_KD}:{V_KD+15}]" if kb else "0"
        g(f"v_mfma_f32_32x32x16_bf16 v[{V_KD}:{V_KD+15}], {vq(V_AOP+4*(kb%8))}, {aq(4*kb)}, {cin}")
        if kb + NPF < 16: rdA(kb + NPF)
        if kb >= 4 or True:
            pass
    stamp_at(4)
    g("s_nop 7\ns_nop 3")
    D = V_KD
    S0, S1, S2, S8, S10, S11, T10, T11 = [V_S + i for i in range(8)]
    def shift(dst, cur, nxt):
        g(f"v_mov_b32_dpp v{dst}, v{nxt} wave_rol:1 row_mask:0xf bank_mask:0xf")
        g(f"v_mov_b32_dpp v{dst}, v{cur} wave_shl:1 row_mask:0xf bank_mask:0xf")
    def val(p, beta):
        if p == 0: return D+beta if beta <= 7 else [S0, S1, S2][beta-8]
        if p == 1: return D+8 if beta <= 2 else (D+9 if beta <= 5 else S8)
        v, S, T = (D+10, S10, T10) if p == 2 else (D+11, S11, T11)
        return v if beta <= 3 else (T if beta == 4 else S)
    NPRE = env('NPRE', 16)
    preA = []
    if 'late1' in OPT:
        preA = [-s_ for s_ in range(1, 16, 2)]; NPRE = 8
    else:
        for s_ in range(1, 16, 2): preA += [-s_, 16 - s_]
    PRE_A.clear(); PRE_A.update(preA[:NPRE])
    def epi(m):
        shift(S0, D+0, D+8)
        if m == 1:
            shift(S1, D+1, D+8); shift(S2, D+2, D+8)
        nn = [0]
        def chunk(p, e):
            rho = 2*m + e
            c = V_CH + 4 * (nn[0] % 2); nn[0] += 1
            for d in range(4):
                g(f"v_cvt_pk_bf16_f32 v{c+d}, v{val(p, rho+7-2*d)}, v{val(p, rho+6-2*d)}")
            g(f"ds_write_b128 v{V_KW}, {vq(c)} offset:{e*CP1 + 1024*(3-p)}")
        chunk(0, 0); chunk(0, 1)
        g(f"s_mov_b64 exec, 15")
        Z = V_CH + 8
        g(f"v_mov_b32 v{Z+2}, 0\nv_mov_b32 v{Z+3}, 0\nv_mov_b32 v{Z+6}, 0\nv_mov_b32 v{Z+7}, 0")
        for e in (0, 1):
            rho = 2*m + e
            b_ = Z + 4*e
            def kv(i): return f"v{D+i}" if i >= 0 else "0"
            if rho == 0:
                g(f"v_mov_b32 v{b_}, 0\nv_mov_b32 v{b_+1}, 0")
            else:
                g(f"v_cvt_pk_bf16_f32 v{b_}, {kv(rho-1)}, {kv(rho-2)}")
                g(f"v_cvt_pk_bf16_f32 v{b_+1}, {kv(rho-3)}, {kv(rho-4)}")
                g(f"v_and_b32 v{b_}, v{V_ML0}, v{b_}")
                g(f"v_and_b32 v{b_+1}, v{V_ML0}, v{b_+1}")
            g(f"ds_write_b128 v{V_SP}, {vq(b_)} offset:{e*CP1+4096}")
        g(f"s_mov_b64 exec, -1")
        g("s_waitcnt lgkmcnt(0)\ns_barrier")
        shift(S8, D+8, D+10); shift(S10, D+10, D+11); shift(S11, D+11, D+12)
        g(f"v_bfi_b32 v{T10}, v{V_MODD}, v{S10}, v{D+10}")
        g(f"v_bfi_b32 v{T11}, v{V_MODD}, v{S11}, v{D+11}")
        wi = 0
        for p in range(1, 4):
            for e in (0, 1):
                chunk(p, e)
                NW = env('AWIN', 2)
                for _ in range(2):
                    if wi >= NPRE: break
                    W = preA[wi]; wi += 1
                    g(f"ds_read_b128 {aq(win_areg(W, pA))}, v{V_UR} offset:{16*(W+15)}")
                if wi == 8: g("s_waitcnt lgkmcnt(6)")
        if wi < NPRE:
            g("s_waitcnt lgkmcnt(8)")
            for W in preA[wi:NPRE]:
                g(f"ds_read_b128 {aq(win_areg(W, pA))}, v{V_UR} offset:{16*(W+15)}")
    g(f"s_cmp_eq_u32 s{S_M}, 0\ns_cbranch_scc0 L_epi1")
    epi(0)
    g("s_branch L_epi_done\nL_epi1:")
    epi(1)
    g("L_epi_done:")
    if 'prioK' in OPT: g("s_setprio 0")
    stamp_at(5)
    g("s_waitcnt lgkmcnt(0)\ns_barrier")
    stamp_at(6)
    conv(1, 0, [])
    g("s_branch L_fin" if stamps else "s_endpgm")
    g("L_roleB:")
    g(f"s_mov_b32 s{S_C256}, 0x43800000\ns_mov_b32 s{S_C256+1}, 0x43800000")
    for x in ot_lines([1, 3]): g(x)
    g(f"""
v_and_b32 v{V_T0}, 1, v{V_LANE}
v_bfe_u32 v{V_T1}, v{V_LANE}, 1, 3
v_lshlrev_b32 v{V_T1}, 2, v{V_T1}
s_cmp_eq_u32 s{S_M}, 0
s_cselect_b32 s{S_T2}, -3, 1
s_cselect_b32 s{S_T3}, 3, 1
v_mul_i32_i24 v{V_ACC+1}, s{S_T2}, v{V_T0}
v_add_u32 v{V_ACC+1}, s{S_T3}, v{V_ACC+1}
v_add_u32 v{V_T1}, v{V_T1}, v{V_ACC+1}
v_lshrrev_b32 v{V_T2}, 4, v{V_LANE}
v_lshlrev_b32 v{V_T2}, 3, v{V_T2}
v_sub_u32 v{V_DF}, v{V_T1}, v{V_T2}
""")
    dt_code(False, 6 if 'latedsk' in OPT else 7)
    g("s_waitcnt vmcnt(4)" if 'earlyu' in OPT else "s_waitcnt vmcnt(0)")
    stamp_at(2)
    if 'prioB' in OPT: g("s_setprio 1")
    if 'latedsk' in OPT: g(f"global_load_ushort v{V_DSK}, v{V_DSK}, {sp(P_DSK)}")
    if 'earlyu' not in OPT:
        uload(P_U, 0); uload(S_UT+2, 1)
    if 'u2early' in OPT: uload_to(S_UT+4, V_U2)
    for M in (0, 1):
        unpack(MB(M)+R_AL, V_PAR, M); unpack(MB(M)+R_AL+1, V_PAR+1, M)
        unpack(MB(M)+R_B, V_PAR+2, M); unpack(MB(M)+R_B+1, V_PAR+3, M)
        unpack(MB(M)+R_CC, V_PAR+4, M); unpack(MB(M)+R_CC+1, V_PAR+5, M)
    both(lambda b: g(f"v_pk_mul_f32 {vp(b+R_AL)}, {vp(b+R_AL)}, {vp(V_DT)}"))
    both(lambda b: cmul(b+R_C, b+R_CC, b+R_B, b+R_T))
    both(lambda b: g(f"v_pk_mul_f32 {vp(b+R_C)}, {vp(b+R_C)}, {vp(V_DT+2)} neg_hi:[1,0]"))
    direct(R_Z1, R_AL)
    both(lambda b: g(f"v_pk_mul_f32 {vp(b+R_T)}, {vp(b+R_AL)}, {sp(S_C256)}"))
    direct(R_Z256, R_T)
    rowpos = {0:[0],1:[1],2:[2],3:[3],256:[4,5],258:[6],260:[7,12,13],4:[8],5:[9],6:[10],7:[11],262:[14],264:[15],
              512:[16],516:[17],1024:[18],1536:[19],768:[20],772:[21],1280:[22],1792:[23],2048:[24]}
    wcount[0] = 0
    twrite(R_C, rowpos[0])
    both(lambda b: cmul(b+R_Z2, b+R_Z1, b+R_Z1, b+R_T))
    both(lambda b: cmul(b+R_Z4, b+R_Z2, b+R_Z2, b+R_T))
    prev = R_C
    for r in range(1, 8):
        dst = {2:R_X2, 4:R_X4, 6:R_X6}.get(r, R_X)
        both(lambda b: cmul(b+dst, b+prev, b+R_Z1, b+R_T, conj=True))
        twrite(dst, rowpos[r])
        prev = dst
    if 'u2late' not in OPT and 'u2early' not in OPT: uload_to(S_UT+4, V_U2)
    both(lambda b: cmul(b+R_E, b+R_C, b+R_Z256, b+R_T, conj=True))
    twrite(R_E, rowpos[256])
    for src, r in ((R_X2, 258), (R_X6, 262), (R_X4, 260)):
        both(lambda b: cmul(b+R_X, b+src, b+R_Z256, b+R_T, conj=True))
        twrite(R_X, rowpos[r])
    both(lambda b: cmul(b+R_X, b+R_X, b+R_Z4, b+R_T, conj=True))
    twrite(R_X, rowpos[264])
    for k in range(2, 9):
        both(lambda b: cmul(b+R_E, b+R_E, b+R_Z256, b+R_T, conj=True))
        twrite(R_E, rowpos[256*k])
        if k in (2, 3):
            both(lambda b: cmul(b+R_X, b+R_E, b+R_Z4, b+R_T, conj=True))
            twrite(R_X, rowpos[256*k+4])
    stamp_at(3)
    if 'prioB' in OPT: g("s_setprio 0")
    if 'u2late' in OPT: uload_to(S_UT+4, V_U2)
    g("s_waitcnt lgkmcnt(0)\ns_barrier")
    g("s_waitcnt vmcnt(4)" if 'late1' in OPT else "s_waitcnt vmcnt(2)")
    if 'late1' in OPT:
        stage(0, 0, V_PT)
    else:
        stage(0, 0, V_PT); stage(1, 1, V_PT)
    uload(S_UT+6, 0)
    g(f"""
v_mov_b32 v{V_ACC}, 0
v_mov_b32 v{V_ACC+1}, 0
v_mov_b32 v{V_ACC+2}, 0
v_mov_b32 v{V_ACC+3}, 0
ds_write_b128 v{V_XW}, {vq(V_ACC)}
v_lshl_add_u32 v{V_T0}, v{V_DF}, 1, v{V_XW}
v_cmp_gt_u32 vcc, 8, v{V_DF}
s_and_saveexec_b64 s[{S_L0}:{S_L0+1}], vcc
ds_write_b16 v{V_T0}, v{V_DSK}
s_mov_b64 exec, s[{S_L0}:{S_L0+1}]
ds_read_b128 {vq(V_DF)}, v{V_XW}
""")
    stamp_at(4)
    g("s_waitcnt lgkmcnt(0)\ns_barrier")
    stamp_at(6)
    conv(0, 1, [])
    g("L_fin:")
    if stamps:
        g("s_waitcnt vmcnt(0)")
        stamp_at(11)
        g("s_memrealtime s[74:75]")
        g("s_waitcnt lgkmcnt(0)")
        g("s_load_dwordx2 s[14:15], s[0:1], 80")
        g("s_load_dwordx2 s[12:13], s[0:1], 88")
        g("s_waitcnt lgkmcnt(0)")
        g(f"s_lshl_b32 s11, s2, 3\ns_add_u32 s11, s11, s{S_W}\ns_lshl_b32 s11, s11, 7")
        g("s_add_u32 s12, s12, s11\ns_addc_u32 s13, s13, 0")
        g("s_mov_b64 exec, 1")
        g("v_mov_b32 v13, 0")
        for i in range(12):
            if i == 0: g("v_mov_b32 v14, s76")
            else: g(f"s_sub_u32 s66, s{76+2*i}, s76\nv_mov_b32 v14, s66")
            g(f"global_store_dword v13, v14, s[12:13] offset:{4*i}")
            g(f"s_cmp_eq_u32 s11, 0\ns_cbranch_scc0 L_nd{i}\nglobal_store_dword v13, v14, s[14:15] offset:{4*i}\nL_nd{i}:")
        g("s_sub_u32 s66, s98, s76\nv_mov_b32 v14, s66\nglobal_atomic_umax v13, v14, s[14:15] offset:48")
        g("s_sub_u32 s66, s80, s76\nv_mov_b32 v14, s66\nglobal_atomic_umax v13, v14, s[14:15] offset:52")
        g("v_mov_b32 v14, s74\nglobal_atomic_umax v13, v14, s[14:15] offset:56")
        g("s_not_b32 s66, s72\nv_mov_b32 v14, s66\nglobal_atomic_umax v13, v14, s[14:15] offset:60")
        g("v_mov_b32 v14, s72\nglobal_store_dword v13, v14, s[12:13] offset:120")
        g("v_mov_b32 v14, s74\nglobal_store_dword v13, v14, s[12:13] offset:124")
        g("s_waitcnt vmcnt(0)")
    g("L_end:\ns_endpgm")
    return g

HEADER = """; S4 / SSM long convolution, gfx950.  y[l,d] = bf16(bf16(sum_j K[d,j] u[l-j,d]) + bf16(u[l,d] Dskip[d])) up to rounding,
; K[d,j] = Re sum_n C B dt exp(dt A q(j)), q(j) = j rounded to bf16 (as the reference does), so K has 641 distinct values per channel.
; Kernarg (96 bytes): u, A_re, A_im, B_re, B_im, C_re, C_im, log_dt, Dskip, out, debug, ws (8-byte pointers).
; One workgroup = 4 channels x half of the output rows (row phase m); 8 waves: wave w -> channel w&3, role w>>2.
;  1. tables   : role 0 builds z^(8j), j=0..31, role 1 builds conj(c z^r) for 22 offsets r (lane = 2 modes), bf16, in LDS
;  2. K-gen    : 32x32x16 MFMAs contract the 128 complex modes -> K(r + 8j); expanded to two shifted, reversed bf16 copies of K
;  3. conv     : Toeplitz blocks of K x windows of u with 16x16x32 MFMAs (role 0 odd lag blocks, role 1 even ones + the Dskip diagonal)
;  4. output   : partial sums of both roles meet in LDS, rows of 4 channels are stored as 8-byte pieces
; @launch grid=(256,1,1) block=(512,1,1) lds=%d
.amdgcn_target "amdgcn-amd-amdhsa--gfx950"
.text
.globl standalone__ssm_conv_s4__prompt_kernel
.p2align 12
.fill 0x340, 4, 0xBF800000
.p2align 8
.type standalone__ssm_conv_s4__prompt_kernel,@function
standalone__ssm_conv_s4__prompt_kernel:
""" % LDS_TOTAL
def footer(ns): return """.section .rodata,"a"
.p2align 6
.amdhsa_kernel standalone__ssm_conv_s4__prompt_kernel
  .amdhsa_next_free_vgpr 256
  .amdhsa_next_free_sgpr %d
  .amdhsa_accum_offset 128
  .amdhsa_group_segment_fixed_size 0
  .amdhsa_kernarg_size 96
  .amdhsa_user_sgpr_count 2
  .amdhsa_user_sgpr_kernarg_segment_ptr 1
  .amdhsa_system_sgpr_workgroup_id_x 1
.end_amdhsa_kernel
""" % ns
def assemble_sizes(text):
    import subprocess, re, tempfile
    sys.path.insert(0, "cdna_kernels")
    open("_p.s", "w").write(text)
    r = subprocess.run(["clang", "-x", "assembler", "-target", "amdgcn-amd-amdhsa", "-mcpu=gfx950", "-c", "_p.s", "-o", "_p.o"], capture_output=True, text=True)
    assert r.returncode == 0, r.stderr
    d = subprocess.run(["llvm-objdump", "-d", "--mcpu=gfx950", "_p.o"], capture_output=True, text=True).stdout
    addrs = []
    started = False
    for ln in d.split("\n"):
        if "<standalone__ssm_conv_s4__prompt_kernel>:" in ln: started = True; continue
        if not started: continue
        m = re.search(r"// ([0-9A-F]{12}):", ln)
        if m: addrs.append(int(m.group(1), 16))
    return addrs

if __name__ == "__main__":
    out = sys.argv[1]
    st = len(sys.argv) > 2 and sys.argv[2] == "stamps"
    g = gen(st)
    def isinstr(l): return not (l.endswith(":") or l.startswith(".") or l.startswith(";"))
    for pg in (1, 2):
        tmp = G(); tmp.L = list(g.L)
        have = [l for l in tmp.L if l.startswith("L_pg") and l.endswith(":")]
        for k in (1, 2):
            if f"L_pg{k}:" not in have: tmp.L.append(f"L_pg{k}:"); tmp.L.append("s_endpgm")
        addrs = assemble_sizes(HEADER + tmp.text() + footer(102 if st else 72))
        base = addrs[0]
        idx = [i for i, l in enumerate(g.L) if isinstr(l)]
        pos = None
        for n, i in enumerate(idx):
            if addrs[n] - base >= pg * 4096:
                pos = i; break
        if pos is None:
            g.L += [f"L_pg{pg}:", "s_cbranch_execz L_back", "s_endpgm"]
        else:
            g.L[pos:pos] = [f"L_pg{pg}:", "s_cbranch_execz L_back"]
    open(out, "w").write(HEADER + g.text() + footer(102 if st else 72))
    print("LDS", LDS_TOTAL, "lines", len(g.L))
```
